```python
import torch

def _softmax(x, axis=-1):
    return torch.softmax(x, dim=axis)

def _gelu(x):
    return torch.nn.functional.gelu(x, approximate='tanh')

def _silu(x):
    return torch.nn.functional.silu(x)

def _sigmoid(x):
    return torch.sigmoid(x)

def _layernorm(x, axis=-1, eps=1e-05):
    m = x.mean(dim=axis, keepdim=True)
    v = x.var(dim=axis, keepdim=True, unbiased=False)
    return (x - m) / torch.sqrt(v + eps)

def _scatter_add(tgt, idx, src, axis=0):
    return tgt.clone().index_add_(axis, idx, src)

def _segment_sum(src, seg, n):
    out = torch.zeros((n,) + src.shape[1:], dtype=src.dtype)
    return out.index_add_(0, seg, src)

def _pad(x, pw):
    flat = tuple((v for pair in reversed(pw) for v in pair))
    return torch.nn.functional.pad(x, flat)
kernel_name = 'standalone__autoregressive_conv_wavenet__speech'

def setup_inputs():

    _w = lambda a: (lambda t: t.to(torch.bfloat16) if t.is_floating_point() else t)(torch.as_tensor(a))
    B, T, D, K = (2, 1000, 512, 31)
    return {'x': _w((lambda *s: torch.randn(*s, dtype=torch.bfloat16) * 0.05)(B, T, D)), 'w': _w((lambda *s: torch.randn(*s, dtype=torch.bfloat16) * 0.05)(K, D, 2 * D)), 'w_o': _w((lambda *s: torch.randn(*s, dtype=torch.bfloat16) * 0.05)(D, D))}

def reference(x, w, w_o):
    B, T, D = x.shape
    K = w.shape[0]
    dil = 2
    pad = (K - 1) * dil
    xp = _pad(x, ((0, 0), (pad, 0), (0, 0)))
    h = torch.einsum('btc,cd->btd', xp[:, pad:pad + T, :], w[0])
    for i in range(1, K):
        off = pad - i * dil
        h = h + torch.einsum('btc,cd->btd', xp[:, off:off + T, :], w[i])
    f = h[..., :D].clone()
    g = h[..., D:].clone()
    z = torch.tanh(f) * _sigmoid(g)
    return z @ w_o
```

```python
import re

def regs_of(tok):
    tok = tok.strip()
    neg = tok.lstrip('-')
    m = re.fullmatch(r'(?:abs\()?([vas])(\d+)\)?', neg)
    if m: return [(m.group(1), int(m.group(2)))]
    m = re.fullmatch(r'([vas])\[(\d+):(\d+)\]', neg)
    if m: return [(m.group(1), i) for i in range(int(m.group(2)), int(m.group(3)) + 1)]
    if neg in ('vcc', 'm0', 'exec'): return [('x', neg)]
    return []

TRANS = ('v_exp_f32', 'v_log_f32', 'v_rcp_f32', 'v_rsq_f32', 'v_sqrt_f32', 'v_sin_f32', 'v_cos_f32')

class Ins:
    def __init__(self, text):
        self.text = text
        body = text.split(';')[0].strip()
        self.op = body.split()[0]
        rest = body[len(self.op):].strip()
        ops = [o.strip() for o in re.split(r',(?![^\[]*\])', rest)] if rest else []
        if ops: ops[-1:] = ops[-1].split()[:1] if ops[-1] else []
        op = self.op
        self.kind = ('mfma' if op.startswith('v_mfma') else 'valu' if op.startswith('v_') else 'ds' if op.startswith('ds_')
                     else 'vmem' if op.startswith(('buffer_', 'global_')) else 'salu')
        R = [regs_of(o) for o in ops]
        flat = lambda L: [r for x in L for r in x]
        self.w, self.r = [], []
        self.srcc = []
        if self.kind == 'mfma':
            self.w = R[0]; self.r = flat(R[1:]); self.srcc = R[3]; self.ab = flat(R[1:3])
            self.passes = 8 if '32x32x16' in op else 4
        elif self.kind == 'valu':
            self.w = R[0]; self.r = flat(R[1:])
            if 'permlane' in op and 'swap' in op: self.w = R[0] + R[1]; self.r = R[0] + R[1]
            if op.startswith(('v_fmac', 'v_fmaak_never')): self.r += R[0]
            if op.startswith('v_cndmask') and len(ops) == 3: self.r.append(('x', 'vcc'))
        elif self.kind == 'ds':
            if 'read' in op: self.w = R[0]; self.r = flat(R[1:])
            else: self.r = flat(R)
        elif self.kind == 'vmem':
            self.lds = bool(re.search(r'\blds\b', body))
            if 'load' in op and not self.lds: self.w = R[0]; self.r = flat(R[1:])
            else: self.r = flat(R)
            if self.lds: self.r.append(('x', 'm0'))
            self.store_data = R[0] if 'store' in op and op.startswith('buffer') else []
            if not R: self.w = []
        else:
            if op.startswith(('s_cmp', 's_cbranch', 's_branch', 's_waitcnt', 's_barrier', 's_nop', 's_endpgm', 's_setprio', 's_sleep')): self.r = flat(R)
            else: self.w = R[0] if R else []; self.r = flat(R[1:])
        self.states = 1
        if op == 's_nop': self.states = int(ops[0]) + 1

def need(p, c):
    pw, cr, cw = set(p.w), set(c.r), set(c.w)
    n = 0
    if p.kind == 'mfma':
        lat = {4: 8, 8: 12}[p.passes]
        if c.kind == 'mfma':
            if pw & set(c.ab): n = max(n, lat)
            if pw & set(c.srcc):
                if not (c.srcc == p.w and c.passes == p.passes): n = max(n, lat - 2)
            elif pw & cw: n = max(n, lat - 2)
        elif c.kind in ('valu', 'ds', 'vmem'):
            if pw & (cr | cw): n = max(n, lat)
        if c.kind == 'valu' and set(p.srcc) & cw: n = max(n, {4: 3, 8: 7}[p.passes])
    elif p.kind == 'valu':
        vw = {r for r in pw if r[0] in 'va'}; sw = pw - vw
        if c.kind == 'mfma' and vw & cr: n = max(n, 2)
        if c.kind == 'valu':
            if 'permlane' in c.op and vw & cr: n = max(n, 2)
            if c.op.startswith(('v_readfirstlane', 'v_readlane')) and vw & cr: n = max(n, 1)
            if p.op.startswith(TRANS) and vw & cr: n = max(n, 1)
            if sw & cr: n = max(n, 2)
        if c.kind == 'vmem' and sw & cr: n = max(n, 5)
        if c.kind == 'salu' and sw & cr: n = max(n, 1)
    elif p.kind == 'salu':
        if ('x', 'm0') in pw and c.kind == 'vmem' and c.lds: n = max(n, 1)
    elif p.kind == 'vmem':
        if len(p.store_data) >= 3 and set(p.store_data) & cw: n = max(n, 2)
    return n

class Emit:
    def __init__(self):
        self.lines = []
        self.hist = []
        self.ds = []
        self.nops = 0
        self.count = 0
        self.age = 14
    def raw(self, s):
        self.lines.append(s)
    def label(self, name, keep=False):
        self.lines.append(name + ':')
        if not keep: self.fence()
    def fence(self):
        self.hist = []; self.ds = []
    def _push(self, i):
        self.lines.append('    ' + i.text); self.hist.append(i); self.hist = self.hist[-24:]; self.count += 1
    def __call__(self, text):
        for t in text.split('\n'):
            t = t.strip()
            if t: self.one(t)
    def one(self, text):
        i = Ins(text)
        if i.op == 's_waitcnt':
            m = re.search(r'lgkmcnt\((\d+)\)', text)
            if m: self.ds = self.ds[max(0, len(self.ds) - int(m.group(1))):]
            self._push(i); return
        touched = set(i.r) | set(i.w)
        last = -1
        for k, d in enumerate(self.ds):
            if set(d.w) & touched or (set(d.r) & set(i.w) and not d.w and i.kind != 'ds'): last = k
        if i.kind == 'ds' and len(self.ds) >= 15: last = max(last, len(self.ds) - 15)
        if last >= 0:
            while last + 1 < len(self.ds) and self.count - self.ds[last + 1].at >= self.age: last += 1
            n = len(self.ds) - 1 - last
            self._push(Ins(f's_waitcnt lgkmcnt({n})')); self.ds = self.ds[last + 1:]
        dist = 0; pad = 0
        for p in reversed(self.hist):
            pad = max(pad, need(p, i) - dist); dist += p.states
        if pad > 0:
            self.nops += pad
            while pad > 0:
                k = min(pad, 16); self._push(Ins(f's_nop {k-1}')); pad -= k
        if i.kind == 'ds':
            i.at = self.count
            self.ds.append(i)
        self._push(i)
    def text(self): return '\n'.join(self.lines) + '\n'

def kernel_desc(name, vgpr, sgpr=96, accum=None):
    accum = accum or ((vgpr + 3) // 4) * 4
    return f'''.p2align 6
.amdhsa_kernel {name}
  .amdhsa_next_free_vgpr {vgpr}
  .amdhsa_next_free_sgpr {sgpr}
  .amdhsa_accum_offset {accum}
  .amdhsa_group_segment_fixed_size 0
  .amdhsa_kernarg_size 48
  .amdhsa_user_sgpr_count 2
  .amdhsa_user_sgpr_kernarg_segment_ptr 1
  .amdhsa_system_sgpr_workgroup_id_x 1
  .amdhsa_float_denorm_mode_32 3
.end_amdhsa_kernel'''
```

```python
import sys, struct
from emit import Emit, kernel_desc

XB, WB, WOB, OB, WSB = 2048000, 31 * 512 * 1024 * 2, 512 * 512 * 2, 2048000, 256 << 20
XF_OFF, Y_OFF, Z_OFF, STAMP_OFF = 0, 4 << 20, 24 << 20, 128 << 20
BIG = 0x7ff00000
def f32(x): return '0x%08x' % struct.unpack('<I', struct.pack('<f', x))[0]

class Cfg:
    stamps = False
    D = 4
    w_aux = 'nt'
    x_aux = 'nt'
    splits = (22, 21, 21)
    def __init__(self, **kw): self.__dict__.update(kw)

def srd(e, d, base, nbytes):
    e(f's_mov_b32 s{d}, s{base}\ns_mov_b32 s{d+1}, s{base+1}\ns_mov_b32 s{d+2}, {nbytes}\ns_mov_b32 s{d+3}, 0x00020000')

def head(e, name, nwg, cfg):
    e.raw(f'.globl {name}\n.p2align 8\n.type {name},@function')
    e.label(name)
    e(f's_cmp_ge_u32 s2, {nwg}\ns_cbranch_scc1 L_end_{name}')
    if cfg.stamps: e('s_memrealtime s[80:81]')
    e('s_load_dwordx4 s[4:7], s[0:1], 0\ns_load_dwordx4 s[8:11], s[0:1], 16\ns_load_dwordx2 s[12:13], s[0:1], 40')
    e('v_lshrrev_b32 v1, 6, v0\nv_and_b32 v0, 63, v0\nv_readfirstlane_b32 s3, v1')

def stamp(e, cfg, k):
    if cfg.stamps: e(f's_memrealtime s[{80+2*k}:{81+2*k}]')

def tail(e, name, cfg, slot, ws):
    if cfg.stamps:
        e('s_waitcnt vmcnt(0)\ns_memrealtime s[86:87]\ns_waitcnt lgkmcnt(0)')
        e('v_mov_b32 v8, s80\nv_mov_b32 v9, s82\nv_mov_b32 v10, s84\nv_mov_b32 v11, s86')
        e(f's_lshl_b32 s88, s2, 3\ns_add_u32 s88, s88, s3\ns_lshl_b32 s88, s88, 4\ns_add_u32 s88, s88, {STAMP_OFF + slot * 65536}')
        e(f'v_mov_b32 v6, 0\nbuffer_store_dwordx4 v[8:11], v6, s[{ws}:{ws+3}], s88 offen')
    e('s_endpgm')

def twiddles(e, dst, mul, base, consts, tmp):
    for i0 in range(0, len(consts), 8):
        for j in range(8): e(f'v_fmamk_f32 v{tmp+j}, v{mul}, {f32(consts[i0+j])}, v{base}')
        for j in range(8): e(f'v_cos_f32 v{tmp+j}, v{tmp+j}')
        for j in range(0, 8, 2): e(f'v_cvt_pk_bf16_f32 v{dst+(i0+j)//2}, v{tmp+j}, v{tmp+j+1}')

def k1(e, cfg):
    name = 'xdft_kernel'
    head(e, name, 256, cfg)
    e('s_lshr_b32 s20, s2, 4')
    e('s_and_b32 s21, s2, 7\ns_lshl_b32 s21, s21, 1\ns_bfe_u32 s22, s2, 0x10003\ns_add_u32 s21, s21, s22')
    e('s_lshr_b32 s23, s20, 3\ns_bfe_u32 s24, s20, 0x10002\ns_and_b32 s25, s20, 3')
    e('s_lshl_b32 s26, s25, 7\ns_lshl_b32 s27, s3, 5\ns_add_u32 s26, s26, s27\ns_sub_u32 s26, s26, 32')
    e('s_mul_i32 s27, s23, 1000\ns_add_u32 s27, s27, s24\ns_lshl_b32 s27, s27, 10\ns_lshl_b32 s28, s21, 6\ns_add_u32 s27, s27, s28')
    e('v_lshrrev_b32 v2, 2, v0\nv_add_u32 v2, s26, v2')
    e('v_and_b32 v3, 3, v0\nv_lshlrev_b32 v3, 4, v3\nv_add_u32 v3, s27, v3')
    e(f'v_mov_b32 v7, {BIG}\ns_movk_i32 s29, 500')
    e('v_lshl_add_u32 v4, v2, 11, v3\nv_cmp_gt_u32 vcc, s29, v2\nv_cndmask_b32 v4, v7, v4, vcc')
    e('v_add_u32 v2, 16, v2\nv_lshl_add_u32 v5, v2, 11, v3\nv_cmp_gt_u32 vcc, s29, v2\nv_cndmask_b32 v5, v7, v5, vcc')
    e('s_waitcnt lgkmcnt(0)')
    srd(e, 16, 4, XB); srd(e, 32, 12, WSB)
    e('s_lshl_b32 s28, s3, 11\ns_mov_b32 m0, s28')
    e(f'buffer_load_dwordx4 v4, s[16:19], 0 offen {cfg.x_aux} lds')
    e('s_add_u32 m0, s28, 1024')
    e(f'buffer_load_dwordx4 v5, s[16:19], 0 offen {cfg.x_aux} lds')
    e('v_and_b32 v8, 15, v0\ns_lshl_b32 s28, s3, 4\nv_add_u32 v8, s28, v8\nv_lshl_add_u32 v8, v8, 1, 1\nv_cvt_f32_u32 v8, v8')
    e(f'v_mul_f32 v8, {f32(1/320)}, v8')
    e('v_bfe_u32 v9, v0, 4, 1\nv_cvt_f32_u32 v9, v9\nv_mul_f32 v9, 0x3e800000, v9')
    e('v_lshrrev_b32 v10, 5, v0\nv_lshlrev_b32 v10, 3, v10\nv_cvt_f32_u32 v10, v10\nv_fma_f32 v9, v8, v10, v9')
    FB, AB, DB = 24, 64, 104
    twiddles(e, FB, 8, 9, [16 * kk + j for kk in range(10) for j in range(8)], 16)
    e('v_lshrrev_b32 v10, 5, v0\nv_bfe_u32 v11, v0, 2, 2\nv_lshl_add_u32 v10, v10, 3, v11\nv_lshlrev_b32 v10, 6, v10')
    e('v_bfe_u32 v11, v0, 4, 1\nv_lshl_add_u32 v10, v11, 5, v10')
    e('v_and_b32 v11, 1, v0\nv_lshl_add_u32 v10, v11, 4, v10\nv_bfe_u32 v11, v0, 1, 1\nv_lshl_add_u32 v10, v11, 3, v10')
    e('v_lshrrev_b32 v12, 5, v0\nv_mul_u32_u24 v12, 40960, v12\nv_bfe_u32 v11, v0, 4, 1\nv_lshl_add_u32 v12, v11, 12, v12')
    e('v_and_b32 v11, 15, v0\nv_lshl_add_u32 v12, v11, 4, v12')
    e(f's_mul_i32 s28, s21, {4*40960}\ns_lshl_b32 s30, s3, 13\ns_add_u32 s28, s28, s30\ns_lshl_b32 s30, s20, 8\ns_add_u32 s28, s28, s30')
    if XF_OFF: e(f's_add_u32 s28, s28, {XF_OFF}')
    e(f's_add_u32 s30, s28, {2*40960}')
    stamp(e, cfg, 1)
    e('s_waitcnt vmcnt(0) lgkmcnt(0)\ns_barrier')
    def rd(kk):
        for h in range(2): e(f'ds_read_b64_tr_b16 v[{AB+4*kk+2*h}:{AB+4*kk+2*h+1}], v10 offset:{kk*1024+h*256}')
    for kk in range(6): rd(kk)
    for kk in range(10):
        c = '0' if kk == 0 else f'v[{DB}:{DB+15}]'
        e(f'v_mfma_f32_32x32x16_bf16 v[{DB}:{DB+15}], v[{AB+4*kk}:{AB+4*kk+3}], v[{FB+4*kk}:{FB+4*kk+3}], {c}')
        if kk + 6 < 10: rd(kk + 6)
    for i in range(8): e(f'v_cvt_pk_bf16_f32 v{16+i}, v{DB+2*i}, v{DB+2*i+1}')
    stamp(e, cfg, 2)
    e('buffer_store_dwordx4 v[16:19], v12, s[32:35], s28 offen sc1')
    e('buffer_store_dwordx4 v[20:23], v12, s[32:35], s30 offen sc1')
    tail(e, name, cfg, 0, 32)
    e.label(f'L_end_{name}'); e('s_endpgm')
    return name, (256, 320, 10240), 120

XSLOT = 16 * 784
def k2(e, cfg):
    name = 'spec_kernel'
    D = cfg.D; XBASE = D * 32768
    n0, n1, n2 = cfg.splits
    head(e, name, 240, cfg)
    e('s_and_b32 s20, s2, 7\ns_lshr_b32 s21, s2, 3')
    e('s_mul_i32 s22, s21, 52\ns_lshr_b32 s22, s22, 8\ns_mul_i32 s23, s22, 5\ns_sub_u32 s23, s21, s23')
    e('s_mul_i32 s24, s20, 6\ns_add_u32 s24, s24, s22\ns_lshr_b32 s25, s24, 4\ns_and_b32 s26, s24, 15')
    e(f's_mov_b32 s27, 0\ns_mov_b32 s28, {n0}')
    e(f's_cmp_eq_u32 s25, 1\ns_cselect_b32 s27, {n0}, s27\ns_cselect_b32 s28, {n1}, s28')
    e(f's_cmp_eq_u32 s25, 2\ns_cselect_b32 s27, {n0+n1}, s27\ns_cselect_b32 s28, {n2}, s28')
    e('s_waitcnt lgkmcnt(0)')
    srd(e, 16, 6, WB); srd(e, 32, 12, WSB)
    e('s_cmp_ge_u32 s3, 4\ns_cbranch_scc1 L_loader')
    ACC, B, DD, W, A, F = 128, 96, 64, 32, 16, 12
    e('s_and_b32 s36, s3, 1\ns_lshr_b32 s37, s3, 1')
    e('v_and_b32 v8, 7, v0\ns_lshl_b32 s38, s23, 4\ns_lshl_b32 s39, s37, 3\ns_add_u32 s38, s38, s39\nv_add_u32 v8, s38, v8')
    e(f'v_lshl_add_u32 v8, v8, 1, 1\nv_cvt_f32_u32 v8, v8\nv_mul_f32 v8, {f32(1/320)}, v8')
    e('v_bfe_u32 v9, v0, 3, 1\nv_cvt_f32_u32 v9, v9\nv_mul_f32 v9, 0x3e800000, v9')
    e('v_lshrrev_b32 v10, 5, v0\nv_bfe_u32 v11, v0, 4, 1\nv_lshlrev_b32 v10, 4, v10\nv_lshl_add_u32 v10, v11, 2, v10')
    e('v_cvt_f32_u32 v7, v10\nv_fma_f32 v9, v8, v7, v9')
    twiddles(e, F, 8, 9, [0, 1, 2, 3, 8, 9, 10, 11], 16)
    e('v_bfe_u32 v7, v0, 2, 2\nv_add_u32 v10, v10, v7\nv_lshlrev_b32 v2, 7, v10')
    e('v_bfe_u32 v10, v10, 1, 2\ns_lshl_b32 s38, s36, 1\nv_xor_b32 v10, s38, v10\nv_lshl_add_u32 v2, v10, 5, v2')
    e('v_and_b32 v7, 3, v0\nv_lshl_add_u32 v2, v7, 3, v2\nv_xor_b32 v3, 32, v2')
    e('v_bfe_u32 v7, v0, 2, 1\nv_lshrrev_b32 v10, 5, v0\nv_xor_b32 v11, v7, v10\nv_lshlrev_b32 v11, v10, v11\nv_lshlrev_b32 v4, 8, v11')
    e('v_and_b32 v7, 3, v0\nv_bfe_u32 v10, v0, 3, 2\nv_lshl_add_u32 v7, v10, 2, v7\nv_lshl_add_u32 v4, v7, 4, v4')
    e(f's_mul_i32 s38, s37, {8*784}\ns_add_u32 s38, s38, {XBASE}\nv_add_u32 v4, s38, v4')
    e(f'v_lshlrev_b32 v5, 1, v4\nv_add_u32 v5, {XSLOT}, v5')
    e('v_lshlrev_b32 v6, 4, v0')
    e(f's_lshl_b32 s40, s26, 1\ns_add_u32 s40, s40, s36\ns_mul_i32 s40, s40, 3\ns_add_u32 s40, s40, s25\ns_mul_i32 s40, s40, 10')
    e(f's_lshl_b32 s38, s23, 1\ns_add_u32 s38, s38, s37\ns_add_u32 s40, s40, s38\ns_lshl_b32 s40, s40, 10\ns_add_u32 s40, s40, {Y_OFF}')
    for i in range(128): e(f'v_mov_b32 v{ACC+i}, 0')
    e('s_mov_b32 s41, 0\ns_sub_u32 s42, s28, 1\ns_mov_b32 s49, 32768')

    def tr(m, j):
        p, u = m >> 1, m & 1; cc, h = j >> 1, j & 1; r = W + 8 * (m % 4) + 4 * cc + 2 * h
        return f'ds_read_b64_tr_b16 v[{r}:{r+1}], v{2+u} offset:{(2*p+cc)*4096 + h*1024}'
    def hm(m, cc):
        d = DD + 8 * (m % 4) + 4 * cc; w = W + 8 * (m % 4) + 4 * cc
        return f'v_mfma_f32_16x16x32_bf16 v[{d}:{d+3}], v[{F}:{F+3}], v[{w}:{w+3}], 0'
    def cv(m, r):
        p, u = m >> 1, m & 1; d = DD + 8 * (m % 4)
        return f'v_cvt_pk_bf16_f32 v{B+4*(r+4*u)+p}, v{d+r}, v{d+4+r}'
    def sw(p, r): return f'v_permlane16_swap_b32 v{B+4*r+p}, v{B+4*(r+4)+p}'
    GO = [0, 4, 1, 5, 2, 6, 3, 7]
    def ra(i):
        a = A + 4 * (GO.index(i) % 4)
        return f'ds_read_b128 v[{a}:{a+3}], v4 offset:{i*784}'
    def gm(i):
        a = A + 4 * (GO.index(i) % 4); c = ACC + 16 * i
        return f'v_mfma_f32_32x32x16_bf16 v[{c}:{c+15}], v[{a}:{a+3}], v[{B+4*i}:{B+4*i+3}], v[{c}:{c+15}]'
    S = []
    cur = lambda *x: S.extend(('cur', t) for t in x)
    nxt = lambda *x: S.extend(('nxt', t) for t in x)
    cur(hm(7, 0), ra(0), ra(4), hm(7, 1), ra(1), ra(5), *[cv(6, r) for r in range(4)])
    nxt(*[tr(0, j) for j in range(4)])
    cur(*[cv(7, r) for r in range(4)])
    nxt(tr(1, 0), tr(1, 1)); cur(sw(3, 0), sw(3, 1)); nxt(tr(1, 2), tr(1, 3))
    cur(gm(0), sw(3, 2), sw(3, 3)); nxt(*[tr(2, j) for j in range(4)])
    cur(gm(4), ra(2)); nxt(*[tr(3, j) for j in range(4)]); cur(ra(6))
    nxt(hm(0, 0), hm(0, 1))
    cur(gm(1), ra(3)); nxt(*[tr(4, j) for j in range(4)])
    nxt(hm(1, 0), cv(0, 0), hm(1, 1), cv(0, 1))
    cur(gm(5), ra(7)); nxt(*[tr(5, j) for j in range(4)])
    nxt(hm(2, 0), hm(2, 1))
    cur(gm(2)); nxt(cv(1, 0), cv(1, 1), cv(0, 2), cv(2, 0), sw(0, 0), sw(0, 1))
    nxt(hm(3, 0), tr(6, 0), tr(6, 1), hm(3, 1), tr(6, 2), tr(6, 3))
    cur(gm(6)); nxt(cv(1, 2), cv(2, 1), cv(2, 2), tr(7, 0), tr(7, 1), sw(0, 2))
    cur(gm(3)); nxt(cv(0, 3), cv(3, 0), cv(3, 1), cv(2, 3), tr(7, 2), tr(7, 3))
    cur(gm(7)); nxt(cv(1, 3), cv(3, 2), cv(3, 3), sw(1, 0), sw(0, 3), sw(1, 1))
    nxt(hm(4, 0), sw(1, 2), sw(1, 3), hm(4, 1))
    nxt(f's_add_u32 s41, s41, 1\ns_cmp_eq_u32 s41, {D}', hm(5, 0))
    nxt(f's_cselect_b32 s43, {(-(D-1)*32768) & 0xffffffff}, s49\ns_cselect_b32 s41, 0, s41', hm(5, 1))
    nxt('v_add_u32 v2, s43, v2\nv_add_u32 v3, s43, v3')
    nxt(hm(6, 0), cv(4, 0), cv(4, 1), hm(6, 1), cv(4, 2), cv(4, 3))
    cur('v_sub_u32 v4, v5, v4')
    nxt(*[cv(5, r) for r in range(4)], *[sw(2, r) for r in range(4)])
    def body(kinds):
        for k, t in S:
            if k in kinds: e(t)
    stamp(e, cfg, 1)
    e('s_waitcnt lgkmcnt(0)\ns_barrier')
    body(('nxt',))
    e('s_waitcnt lgkmcnt(0)')
    e.raw('.p2align 3')
    e.label('L_cloop', keep=True)
    c0, p0 = e.count, e.nops
    e('s_barrier')
    body(('cur', 'nxt'))
    e('s_sub_u32 s42, s42, 1\ns_cmp_lg_u32 s42, 0\ns_waitcnt lgkmcnt(0)\ns_cbranch_scc1 L_cloop')
    print(f'k2 compute loop: {e.count-c0} instructions, {e.nops-p0} pad states', file=sys.stderr)
    e('s_barrier')
    body(('cur',))
    stamp(e, cfg, 2)
    for r in range(16):
        t = 16 + 4 * r
        for jj in range(4): e(f'v_cvt_pk_bf16_f32 v{t+jj}, v{ACC+32*jj+r}, v{ACC+32*jj+16+r}')
        e(f'buffer_store_dwordx4 v[{t}:{t+3}], v6, s[32:35], s40 offen sc1')
        if r < 15: e(f's_add_u32 s40, s40, {32*30*1024}')
    tail(e, name, cfg, 1, 32)
    e.label('L_loader')
    e('s_sub_u32 s36, s3, 4')
    e('v_lshrrev_b32 v7, 3, v0\ns_lshl_b32 s38, s36, 3\nv_add_u32 v2, s38, v7\nv_lshlrev_b32 v2, 20, v2')
    e('v_bfe_u32 v7, v7, 1, 2\nv_lshlrev_b32 v7, 1, v7\nv_and_b32 v8, 7, v0\nv_xor_b32 v7, v7, v8\nv_lshl_add_u32 v2, v7, 4, v2')
    e('s_lshl_b32 s38, s36, 10\nv_lshlrev_b32 v3, 4, v0\nv_add_u32 v3, s38, v3')
    e(f'v_and_b32 v7, 15, v0\nv_mul_u32_u24 v4, 784, v7\nv_lshrrev_b32 v7, 4, v0\ns_lshl_b32 s39, s36, 2\nv_add_u32 v7, s39, v7\nv_lshl_add_u32 v4, v7, 4, v4')
    e(f'v_add_u32 v4, {XBASE}, v4\nv_lshlrev_b32 v5, 1, v4\nv_add_u32 v5, {XSLOT}, v5')
    e(f's_lshl_b32 s44, s27, 14\ns_lshl_b32 s39, s26, 7\ns_add_u32 s44, s44, s39')
    e(f's_mul_i32 s45, s27, 40960\ns_lshl_b32 s39, s23, 13\ns_add_u32 s45, s45, s39')
    if XF_OFF: e(f's_add_u32 s45, s45, {XF_OFF}')
    XR = 16
    def issue(k):
        x = XR + 8 * k
        e(f'buffer_load_dwordx4 v[{x}:{x+3}], v3, s[32:35], s45 offen\ns_add_u32 s46, s45, 4096')
        e(f'buffer_load_dwordx4 v[{x+4}:{x+7}], v3, s[32:35], s46 offen\ns_add_u32 s45, s45, 40960')
        for cj in range(8):
            e(f's_add_u32 m0, s38, {k*32768 + cj*4096}')
            e(f's_add_u32 s46, s44, {cj*2048}')
            e(f'buffer_load_dwordx4 v2, s[16:19], s46 offen {cfg.w_aux} lds')
        e('s_add_u32 s44, s44, 16384')
    for k in range(D - 1): issue(k)
    e(f's_sub_u32 s47, s28, {D-1}\ns_mov_b32 s42, s28\ns_mov_b32 s48, 0x80008000')
    e(f's_waitcnt vmcnt({10*(D-2)})')
    stamp(e, cfg, 1)
    e('s_barrier')
    e.label('L_lloop')
    for i in range(D):
        k = (D - 1 + i) % D; x = XR + 8 * ((k + 1) % D)
        e(f'ds_write_b128 v4, v[{x}:{x+3}]\nds_write_b128 v4, v[{x+4}:{x+7}] offset:256')
        for j in range(4): e(f'v_xor_b32 v{8+j}, s48, v{x+4+j}')
        e('ds_write_b128 v4, v[8:11] offset:512')
        e(f's_sub_i32 s47, s47, 1\ns_cmp_lt_i32 s47, 0\ns_cbranch_scc1 L_ldry{i}')
        issue(k)
        e(f's_waitcnt vmcnt({10*(D-2)})\ns_branch L_ljoin{i}')
        e.label(f'L_ldry{i}')
        for j in range(1, D - 2):
            e(f's_waitcnt vmcnt({10*(D-2-j)})\ns_cmp_eq_i32 s47, {-j}\ns_cbranch_scc1 L_ljoin{i}')
        e('s_waitcnt vmcnt(0)')
        e.label(f'L_ljoin{i}')
        e('s_sub_u32 s42, s42, 1\ns_cmp_eq_u32 s42, 0\ns_waitcnt lgkmcnt(0)\nv_sub_u32 v4, v5, v4\ns_barrier')
        e('s_cbranch_scc1 L_ldone' if i < D - 1 else 's_cbranch_scc0 L_lloop')
    e.label('L_ldone')
    stamp(e, cfg, 2)
    tail(e, name, cfg, 1, 32)
    e.label(f'L_end_{name}'); e('s_endpgm')
    return name, (240, 512, XBASE + 2 * XSLOT), 256

def gate(e, f, g, n, t):
    L2E = 1.4426950408889634
    for i in range(n): e(f'v_mul_f32 v{t+i}, {f32(2*L2E/80)}, v{f+i}\nv_mul_f32 v{g+i}, {f32(-L2E/80)}, v{g+i}')
    for i in range(n): e(f'v_exp_f32 v{t+i}, v{t+i}\nv_exp_f32 v{g+i}, v{g+i}')
    for i in range(n): e(f'v_add_f32 v{t+i}, 1.0, v{t+i}\nv_add_f32 v{g+i}, 1.0, v{g+i}')
    for i in range(n): e(f'v_rcp_f32 v{t+i}, v{t+i}\nv_rcp_f32 v{g+i}, v{g+i}')
    for i in range(n): e(f'v_fma_f32 v{t+i}, v{t+i}, -2.0, 1.0')
    for i in range(n): e(f'v_mul_f32 v{f+i}, v{t+i}, v{g+i}')

def k3a(e, cfg):
    name = 'gate_kernel'
    head(e, name, 256, cfg)
    e('s_lshr_b32 s20, s2, 4\ns_and_b32 s21, s2, 15')
    e('s_and_b32 s22, s3, 1\ns_lshr_b32 s23, s3, 1')
    e('s_lshl_b32 s24, s20, 5\ns_add_u32 s24, s24, s21\ns_lshl_b32 s25, s22, 4\ns_add_u32 s24, s24, s25')
    e(f's_mul_i32 s24, s24, 30\ns_add_u32 s24, s24, s23\ns_lshl_b32 s24, s24, 10\ns_add_u32 s24, s24, {Y_OFF}')
    e('v_lshlrev_b32 v2, 4, v0\ns_lshl_b32 s26, s3, 10')
    e('s_waitcnt lgkmcnt(0)')
    srd(e, 32, 12, WSB)
    for i in range(15):
        e(f's_add_u32 m0, s26, {i*4096}\ns_add_u32 s25, s24, {i*2048}\nbuffer_load_dwordx4 v2, s[32:35], s25 offen lds')
    e(f'v_and_b32 v8, 31, v0\ns_lshl_b32 s27, s3, 5\ns_add_u32 s27, s27, 32\nv_add_u32 v8, s27, v8\nv_cvt_f32_u32 v8, v8\nv_mul_f32 v8, {f32(1/320)}, v8')
    e('v_lshrrev_b32 v9, 5, v0\nv_cvt_f32_u32 v9, v9\nv_mul_f32 v9, 0x3e800000, v9')
    G, A, ACC = 24, 64, 112
    twiddles(e, G, 8, 9, [2 * k + 1 for k in range(80)], 16)
    e(f's_lshl_b32 s28, s20, 2\ns_add_u32 s28, s28, s3\ns_lshl_b32 s28, s28, 5\ns_lshl_b32 s29, s21, 1\ns_add_u32 s28, s28, s29')
    e(f's_lshl_b32 s28, s28, 10\ns_add_u32 s28, s28, {Z_OFF}')
    stamp(e, cfg, 1)
    e('s_waitcnt lgkmcnt(0)')
    for ch in range(5):
        e(f's_waitcnt vmcnt({12-3*ch})\ns_barrier')
        for x in range(12): e(f'ds_read_b128 v[{A+4*x}:{A+4*x+3}], v2 offset:{(12*ch+x)*1024}')
        for x in range(12):
            ph = 12 * ch + x; m, side = ph >> 1, ph & 1; kb = m % 10; c = ACC + 16 * side
            e(f'v_mfma_f32_32x32x16_bf16 v[{c}:{c+15}], v[{A+4*x}:{A+4*x+3}], v[{G+4*kb}:{G+4*kb+3}], ' + ('0' if m == 0 else f'v[{c}:{c+15}]'))
    stamp(e, cfg, 2)
    gate(e, ACC, ACC + 16, 16, A)
    for i in range(8): e(f'v_cvt_pk_bf16_f32 v{16+i}, v{ACC+2*i}, v{ACC+2*i+1}')
    e('buffer_store_dwordx4 v[16:19], v2, s[32:35], s28 offen sc1')
    e('buffer_store_dwordx4 v[20:23], v2, s[32:35], s28 offen offset:1024 sc1')
    tail(e, name, cfg, 2, 32)
    e.label(f'L_end_{name}'); e('s_endpgm')
    return name, (256, 256, 61440), 144

def k3b(e, cfg):
    name = 'proj_kernel'
    head(e, name, 256, cfg)
    e('s_and_b32 s20, s2, 7\ns_lshr_b32 s21, s2, 3\ns_lshl_b32 s20, s20, 2\ns_and_b32 s22, s21, 3\ns_add_u32 s20, s20, s22\ns_lshr_b32 s21, s21, 2')
    e('s_and_b32 s22, s3, 1\ns_lshr_b32 s23, s3, 1')
    e('v_lshrrev_b32 v7, 3, v0\nv_lshlrev_b32 v2, 10, v7\nv_bfe_u32 v7, v7, 1, 1\nv_lshlrev_b32 v7, 2, v7\nv_and_b32 v8, 7, v0\nv_xor_b32 v7, v7, v8\nv_lshl_add_u32 v2, v7, 4, v2')
    e('v_lshlrev_b32 v3, 4, v0')
    e('s_lshl_b32 s24, s3, 15\ns_lshl_b32 s25, s21, 7\ns_add_u32 s24, s24, s25')
    e(f's_lshl_b32 s25, s20, 16\ns_lshl_b32 s26, s23, 15\ns_add_u32 s25, s25, s26\ns_lshl_b32 s26, s22, 12\ns_add_u32 s25, s25, s26\ns_add_u32 s25, s25, {Z_OFF}')
    e('s_lshl_b32 s26, s3, 12')
    e('s_lshl_b32 s27, s23, 15\ns_lshl_b32 s28, s22, 12\ns_add_u32 s27, s27, s28\ns_add_u32 s27, s27, 65536')
    e('s_waitcnt lgkmcnt(0)')
    srd(e, 16, 8, WOB); srd(e, 32, 12, WSB); srd(e, 36, 10, OB)
    for ch in range(4):
        for x in range(4):
            e(f's_add_u32 m0, s27, {(8*ch+x)*1024}\ns_add_u32 s29, s25, {(8*ch+x)*1024}\nbuffer_load_dwordx4 v3, s[32:35], s29 offen lds')
        for x in range(4):
            e(f's_add_u32 m0, s26, {(16*ch+x)*1024}\ns_add_u32 s29, s24, {(16*ch+x)*8192}\nbuffer_load_dwordx4 v2, s[16:19], s29 offen lds')
    e('v_lshrrev_b32 v7, 5, v0\nv_bfe_u32 v8, v0, 2, 2\nv_lshl_add_u32 v7, v7, 2, v8\nv_lshlrev_b32 v4, 7, v7')
    e('v_bfe_u32 v7, v0, 4, 1\nv_and_b32 v8, 1, v0\nv_lshl_add_u32 v7, v7, 1, v8\nv_bfe_u32 v8, v0, 3, 1\nv_xor_b32 v8, s22, v8\nv_lshl_add_u32 v7, v8, 2, v7')
    e('v_lshl_add_u32 v4, v7, 4, v4\nv_bfe_u32 v7, v0, 1, 1\nv_lshl_add_u32 v4, v7, 3, v4')
    e('s_lshl_b32 s28, s23, 15\ns_add_u32 s28, s28, 65536\nv_add_u32 v5, s28, v3')
    e('s_lshr_b32 s28, s20, 4\ns_bfe_u32 s29, s20, 0x10003\ns_and_b32 s30, s20, 7\ns_lshl_b32 s30, s30, 6\ns_lshl_b32 s31, s23, 5\ns_add_u32 s30, s30, s31')
    e('s_mul_i32 s28, s28, 1000\ns_add_u32 s28, s28, s29\ns_lshl_b32 s28, s28, 10\ns_lshl_b32 s29, s21, 7\ns_add_u32 s28, s28, s29\ns_lshl_b32 s29, s22, 6\ns_add_u32 s28, s28, s29')
    e('v_and_b32 v7, 31, v0\nv_add_u32 v7, s30, v7\nv_lshrrev_b32 v8, 5, v0\nv_lshlrev_b32 v8, 4, v8\nv_add_u32 v8, s28, v8\nv_lshl_add_u32 v6, v7, 11, v8')
    e(f'v_mov_b32 v9, {BIG}\ns_movk_i32 s29, 500\nv_cmp_gt_u32 vcc, s29, v7\nv_cndmask_b32 v6, v9, v6, vcc')
    A, Bz, ACC = 16, 48, 80
    stamp(e, cfg, 1)
    e('s_waitcnt lgkmcnt(0)')
    for ch in range(4):
        e(f's_waitcnt vmcnt({24-8*ch})\ns_barrier')
        def rd(x):
            ks = 8 * ch + x
            for h in range(2): e(f'ds_read_b64_tr_b16 v[{A+4*x+2*h}:{A+4*x+2*h+1}], v4 offset:{ks*2048+h*1024}')
            e(f'ds_read_b128 v[{Bz+4*x}:{Bz+4*x+3}], v5 offset:{ks*1024}')
        for x in range(4): rd(x)
        for x in range(8):
            e(f'v_mfma_f32_32x32x16_bf16 v[{ACC}:{ACC+15}], v[{A+4*x}:{A+4*x+3}], v[{Bz+4*x}:{Bz+4*x+3}], ' + ('0' if ch == 0 and x == 0 else f'v[{ACC}:{ACC+15}]'))
            if x + 4 < 8: rd(x + 4)
    stamp(e, cfg, 2)
    for i in range(8): e(f'v_cvt_pk_bf16_f32 v{16+i}, v{ACC+2*i}, v{ACC+2*i+1}')
    e('buffer_store_dwordx4 v[16:19], v6, s[36:39], 0 offen')
    e('buffer_store_dwordx4 v[20:23], v6, s[36:39], 0 offen offset:32')
    tail(e, name, cfg, 3, 32)
    e.label(f'L_end_{name}'); e('s_endpgm')
    return name, (256, 256, 131072), 96

def generate(path, cfg):
    e = Emit()
    ks = [k(e, cfg) for k in (k1, k2, k3a, k3b)]
    hdr = [f'; @launch kernel={n} grid=({g},1,1) block=({b},1,1) lds={l}' for n, (g, b, l), _ in ks]
    out = '\n'.join(hdr) + '\n.amdgcn_target "amdgcn-amd-amdhsa--gfx950"\n.text\n' + e.text() + '.section .rodata,"a"\n'
    out += '\n'.join(kernel_desc(n, v) for n, _, v in ks) + '\n'
    open(path, 'w').write(out)

if __name__ == '__main__':
    kw = {}
    for a in sys.argv[2:]:
        k, v = a.split('=', 1); kw[k] = eval(v)
    generate(sys.argv[1], Cfg(**kw))
```

```python
import sys, struct
from emit import Emit, kernel_desc

XB, WB, WOB, OB, WSB = 2048000, 31 * 512 * 1024 * 2, 512 * 512 * 2, 2048000, 256 << 20
XF_OFF, Y_OFF, Z_OFF, STAMP_OFF = 0, 4 << 20, 24 << 20, 128 << 20
BIG = 0x7ff00000
def f32(x): return '0x%08x' % struct.unpack('<I', struct.pack('<f', x))[0]

class Cfg:
    stamps = False
    D = 4
    w_aux = 'nt'
    x_aux = 'nt'
    splits = (22, 21, 21)
    def __init__(self, **kw): self.__dict__.update(kw)

def srd(e, d, base, nbytes):
    e(f's_mov_b32 s{d}, s{base}\ns_mov_b32 s{d+1}, s{base+1}\ns_mov_b32 s{d+2}, {nbytes}\ns_mov_b32 s{d+3}, 0x00020000')

def head(e, name, nwg, cfg):
    e.raw(f'.globl {name}\n.p2align 8\n.type {name},@function')
    e.label(name)
    e(f's_cmp_ge_u32 s2, {nwg}\ns_cbranch_scc1 L_end_{name}')
    if cfg.stamps: e('s_memrealtime s[80:81]')
    e('s_load_dwordx4 s[4:7], s[0:1], 0\ns_load_dwordx4 s[8:11], s[0:1], 16\ns_load_dwordx2 s[12:13], s[0:1], 40')
    e('v_lshrrev_b32 v1, 6, v0\nv_and_b32 v0, 63, v0\nv_readfirstlane_b32 s3, v1')

def stamp(e, cfg, k):
    if cfg.stamps: e(f's_memrealtime s[{80+2*k}:{81+2*k}]')

def tail(e, name, cfg, slot, ws):
    if cfg.stamps:
        e('s_waitcnt vmcnt(0)\ns_memrealtime s[86:87]\ns_waitcnt lgkmcnt(0)')
        e('v_mov_b32 v8, s80\nv_mov_b32 v9, s82\nv_mov_b32 v10, s84\nv_mov_b32 v11, s86')
        e(f's_lshl_b32 s88, s2, 3\ns_add_u32 s88, s88, s3\ns_lshl_b32 s88, s88, 4\ns_add_u32 s88, s88, {STAMP_OFF + slot * 65536}')
        e(f'v_mov_b32 v6, 0\nbuffer_store_dwordx4 v[8:11], v6, s[{ws}:{ws+3}], s88 offen')
    e('s_endpgm')

def twiddles(e, dst, mul, base, consts, tmp):
    for i0 in range(0, len(consts), 8):
        for j in range(8): e(f'v_fmamk_f32 v{tmp+j}, v{mul}, {f32(consts[i0+j])}, v{base}')
        for j in range(8): e(f'v_cos_f32 v{tmp+j}, v{tmp+j}')
        for j in range(0, 8, 2): e(f'v_cvt_pk_bf16_f32 v{dst+(i0+j)//2}, v{tmp+j}, v{tmp+j+1}')

def k1(e, cfg):
    name = 'xdft_kernel'
    head(e, name, 256, cfg)
    e('s_lshr_b32 s20, s2, 4')
    e('s_and_b32 s21, s2, 7\ns_lshl_b32 s21, s21, 1\ns_bfe_u32 s22, s2, 0x10003\ns_add_u32 s21, s21, s22')
    e('s_lshr_b32 s23, s20, 3\ns_bfe_u32 s24, s20, 0x10002\ns_and_b32 s25, s20, 3')
    e('s_lshl_b32 s26, s25, 7\ns_lshl_b32 s27, s3, 5\ns_add_u32 s26, s26, s27\ns_sub_u32 s26, s26, 32')
    e('s_mul_i32 s27, s23, 1000\ns_add_u32 s27, s27, s24\ns_lshl_b32 s27, s27, 10\ns_lshl_b32 s28, s21, 6\ns_add_u32 s27, s27, s28')
    e('v_lshrrev_b32 v2, 2, v0\nv_add_u32 v2, s26, v2')
    e('v_and_b32 v3, 3, v0\nv_lshlrev_b32 v3, 4, v3\nv_add_u32 v3, s27, v3')
    e(f'v_mov_b32 v7, {BIG}\ns_movk_i32 s29, 500')
    e('v_lshl_add_u32 v4, v2, 11, v3\nv_cmp_gt_u32 vcc, s29, v2\nv_cndmask_b32 v4, v7, v4, vcc')
    e('v_add_u32 v2, 16, v2\nv_lshl_add_u32 v5, v2, 11, v3\nv_cmp_gt_u32 vcc, s29, v2\nv_cndmask_b32 v5, v7, v5, vcc')
    e('s_waitcnt lgkmcnt(0)')
    srd(e, 16, 4, XB); srd(e, 32, 12, WSB)
    e('s_lshl_b32 s28, s3, 11\ns_mov_b32 m0, s28')
    e(f'buffer_load_dwordx4 v4, s[16:19], 0 offen {cfg.x_aux} lds')
    e('s_add_u32 m0, s28, 1024')
    e(f'buffer_load_dwordx4 v5, s[16:19], 0 offen {cfg.x_aux} lds')
    e('v_and_b32 v8, 15, v0\ns_lshl_b32 s28, s3, 4\nv_add_u32 v8, s28, v8\nv_lshl_add_u32 v8, v8, 1, 1\nv_cvt_f32_u32 v8, v8')
    e(f'v_mul_f32 v8, {f32(1/320)}, v8')
    e('v_bfe_u32 v9, v0, 4, 1\nv_cvt_f32_u32 v9, v9\nv_mul_f32 v9, 0x3e800000, v9')
    e('v_lshrrev_b32 v10, 5, v0\nv_lshlrev_b32 v10, 3, v10\nv_cvt_f32_u32 v10, v10\nv_fma_f32 v9, v8, v10, v9')
    FB, AB, DB = 24, 64, 104
    twiddles(e, FB, 8, 9, [16 * kk + j for kk in range(10) for j in range(8)], 16)
    e('v_lshrrev_b32 v10, 5, v0\nv_bfe_u32 v11, v0, 2, 2\nv_lshl_add_u32 v10, v10, 3, v11\nv_lshlrev_b32 v10, 6, v10')
    e('v_bfe_u32 v11, v0, 4, 1\nv_lshl_add_u32 v10, v11, 5, v10')
    e('v_and_b32 v11, 1, v0\nv_lshl_add_u32 v10, v11, 4, v10\nv_bfe_u32 v11, v0, 1, 1\nv_lshl_add_u32 v10, v11, 3, v10')
    e('v_lshrrev_b32 v12, 5, v0\nv_mul_u32_u24 v12, 40960, v12\nv_bfe_u32 v11, v0, 4, 1\nv_lshl_add_u32 v12, v11, 12, v12')
    e('v_and_b32 v11, 15, v0\nv_lshl_add_u32 v12, v11, 4, v12')
    e(f's_mul_i32 s28, s21, {4*40960}\ns_lshl_b32 s30, s3, 13\ns_add_u32 s28, s28, s30\ns_lshl_b32 s30, s20, 8\ns_add_u32 s28, s28, s30')
    if XF_OFF: e(f's_add_u32 s28, s28, {XF_OFF}')
    e(f's_add_u32 s30, s28, {2*40960}')
    stamp(e, cfg, 1)
    e('s_waitcnt vmcnt(0) lgkmcnt(0)\ns_barrier')
    def rd(kk):
        for h in range(2): e(f'ds_read_b64_tr_b16 v[{AB+4*kk+2*h}:{AB+4*kk+2*h+1}], v10 offset:{kk*1024+h*256}')
    for kk in range(6): rd(kk)
    for kk in range(10):
        c = '0' if kk == 0 else f'v[{DB}:{DB+15}]'
        e(f'v_mfma_f32_32x32x16_bf16 v[{DB}:{DB+15}], v[{AB+4*kk}:{AB+4*kk+3}], v[{FB+4*kk}:{FB+4*kk+3}], {c}')
        if kk + 6 < 10: rd(kk + 6)
    for i in range(8): e(f'v_cvt_pk_bf16_f32 v{16+i}, v{DB+2*i}, v{DB+2*i+1}')
    stamp(e, cfg, 2)
    e('buffer_store_dwordx4 v[16:19], v12, s[32:35], s28 offen sc1')
    e('buffer_store_dwordx4 v[20:23], v12, s[32:35], s30 offen sc1')
    tail(e, name, cfg, 0, 32)
    e.label(f'L_end_{name}'); e('s_endpgm')
    return name, (256, 320, 10240), 120

XSLOT = 16 * 784
def k2(e, cfg):
    name = 'spec_kernel'
    D = cfg.D; XBASE = D * 32768
    n0, n1, n2 = cfg.splits
    head(e, name, 240, cfg)
    e('s_and_b32 s20, s2, 7\ns_lshr_b32 s21, s2, 3')
    e('s_mul_i32 s22, s21, 52\ns_lshr_b32 s22, s22, 8\ns_mul_i32 s23, s22, 5\ns_sub_u32 s23, s21, s23')
    e('s_mul_i32 s24, s20, 6\ns_add_u32 s24, s24, s22\ns_lshr_b32 s25, s24, 4\ns_and_b32 s26, s24, 15')
    e(f's_mov_b32 s27, 0\ns_mov_b32 s28, {n0}')
    e(f's_cmp_eq_u32 s25, 1\ns_cselect_b32 s27, {n0}, s27\ns_cselect_b32 s28, {n1}, s28')
    e(f's_cmp_eq_u32 s25, 2\ns_cselect_b32 s27, {n0+n1}, s27\ns_cselect_b32 s28, {n2}, s28')
    e('s_waitcnt lgkmcnt(0)')
    srd(e, 16, 6, WB); srd(e, 32, 12, WSB)
    e('s_cmp_ge_u32 s3, 4\ns_cbranch_scc1 L_loader')
    ACC, B, DD, W, A, F = 128, 96, 64, 32, 16, 12
    e('s_and_b32 s36, s3, 1\ns_lshr_b32 s37, s3, 1')
    e('v_and_b32 v8, 7, v0\ns_lshl_b32 s38, s23, 4\ns_lshl_b32 s39, s37, 3\ns_add_u32 s38, s38, s39\nv_add_u32 v8, s38, v8')
    e(f'v_lshl_add_u32 v8, v8, 1, 1\nv_cvt_f32_u32 v8, v8\nv_mul_f32 v8, {f32(1/320)}, v8')
    e('v_bfe_u32 v9, v0, 3, 1\nv_cvt_f32_u32 v9, v9\nv_mul_f32 v9, 0x3e800000, v9')
    e('v_lshrrev_b32 v10, 5, v0\nv_bfe_u32 v11, v0, 4, 1\nv_lshlrev_b32 v10, 4, v10\nv_lshl_add_u32 v10, v11, 2, v10')
    e('v_cvt_f32_u32 v7, v10\nv_fma_f32 v9, v8, v7, v9')
    twiddles(e, F, 8, 9, [0, 1, 2, 3, 8, 9, 10, 11], 16)
    e('v_bfe_u32 v7, v0, 2, 2\nv_add_u32 v10, v10, v7\nv_lshlrev_b32 v2, 7, v10')
    e('v_bfe_u32 v10, v10, 1, 2\ns_lshl_b32 s38, s36, 1\nv_xor_b32 v10, s38, v10\nv_lshl_add_u32 v2, v10, 5, v2')
    e('v_and_b32 v7, 3, v0\nv_lshl_add_u32 v2, v7, 3, v2\nv_xor_b32 v3, 32, v2')
    e('v_bfe_u32 v7, v0, 2, 1\nv_lshrrev_b32 v10, 5, v0\nv_xor_b32 v11, v7, v10\nv_lshlrev_b32 v11, v10, v11\nv_lshlrev_b32 v4, 8, v11')
    e('v_and_b32 v7, 3, v0\nv_bfe_u32 v10, v0, 3, 2\nv_lshl_add_u32 v7, v10, 2, v7\nv_lshl_add_u32 v4, v7, 4, v4')
    e(f's_mul_i32 s38, s37, {8*784}\ns_add_u32 s38, s38, {XBASE}\nv_add_u32 v4, s38, v4')
    e(f'v_lshlrev_b32 v5, 1, v4\nv_add_u32 v5, {XSLOT}, v5')
    e('v_lshlrev_b32 v6, 4, v0')
    e(f's_lshl_b32 s40, s26, 1\ns_add_u32 s40, s40, s36\ns_mul_i32 s40, s40, 3\ns_add_u32 s40, s40, s25\ns_mul_i32 s40, s40, 10')
    e(f's_lshl_b32 s38, s23, 1\ns_add_u32 s38, s38, s37\ns_add_u32 s40, s40, s38\ns_lshl_b32 s40, s40, 10\ns_add_u32 s40, s40, {Y_OFF}')
    for i in range(128): e(f'v_mov_b32 v{ACC+i}, 0')
    e('s_mov_b32 s41, 0\ns_sub_u32 s42, s28, 1\ns_mov_b32 s49, 32768')

    def tr(m, j):
        p, u = m >> 1, m & 1; cc, h = j >> 1, j & 1; r = W + 8 * (m % 4) + 4 * cc + 2 * h
        return f'ds_read_b64_tr_b16 v[{r}:{r+1}], v{2+u} offset:{(2*p+cc)*4096 + h*1024}'
    def hm(m, cc):
        d = DD + 8 * (m % 4) + 4 * cc; w = W + 8 * (m % 4) + 4 * cc
        return f'v_mfma_f32_16x16x32_bf16 v[{d}:{d+3}], v[{F}:{F+3}], v[{w}:{w+3}], 0'
    def cv(m, r):
        p, u = m >> 1, m & 1; d = DD + 8 * (m % 4)
        return f'v_cvt_pk_bf16_f32 v{B+4*(r+4*u)+p}, v{d+r}, v{d+4+r}'
    def sw(p, r): return f'v_permlane16_swap_b32 v{B+4*r+p}, v{B+4*(r+4)+p}'
    GO = [0, 4, 1, 5, 2, 6, 3, 7]
    def ra(i):
        a = A + 4 * (GO.index(i) % 4)
        return f'ds_read_b128 v[{a}:{a+3}], v4 offset:{i*784}'
    def gm(i):
        a = A + 4 * (GO.index(i) % 4); c = ACC + 16 * i
        return f'v_mfma_f32_32x32x16_bf16 v[{c}:{c+15}], v[{a}:{a+3}], v[{B+4*i}:{B+4*i+3}], v[{c}:{c+15}]'
    S = []
    cur = lambda *x: S.extend(('cur', t) for t in x)
    nxt = lambda *x: S.extend(('nxt', t) for t in x)
    cur(hm(7, 0), ra(0), ra(4), hm(7, 1), ra(1), ra(5), *[cv(6, r) for r in range(4)])
    nxt(*[tr(0, j) for j in range(4)])
    cur(*[cv(7, r) for r in range(4)])
    nxt(tr(1, 0), tr(1, 1)); cur(sw(3, 0), sw(3, 1)); nxt(tr(1, 2), tr(1, 3))
    cur(gm(0), sw(3, 2), sw(3, 3)); nxt(*[tr(2, j) for j in range(4)])
    cur(gm(4), ra(2)); nxt(*[tr(3, j) for j in range(4)]); cur(ra(6))
    nxt(hm(0, 0), hm(0, 1))
    cur(gm(1), ra(3)); nxt(*[tr(4, j) for j in range(4)])
    nxt(hm(1, 0), cv(0, 0), hm(1, 1), cv(0, 1))
    cur(gm(5), ra(7)); nxt(*[tr(5, j) for j in range(4)])
    nxt(hm(2, 0), hm(2, 1))
    cur(gm(2)); nxt(cv(1, 0), cv(1, 1), cv(0, 2), cv(2, 0), sw(0, 0), sw(0, 1))
    nxt(hm(3, 0), tr(6, 0), tr(6, 1), hm(3, 1), tr(6, 2), tr(6, 3))
    cur(gm(6)); nxt(cv(1, 2), cv(2, 1), cv(2, 2), tr(7, 0), tr(7, 1), sw(0, 2))
    cur(gm(3)); nxt(cv(0, 3), cv(3, 0), cv(3, 1), cv(2, 3), tr(7, 2), tr(7, 3))
    cur(gm(7)); nxt(cv(1, 3), cv(3, 2), cv(3, 3), sw(1, 0), sw(0, 3), sw(1, 1))
    nxt(hm(4, 0), sw(1, 2), sw(1, 3), hm(4, 1))
    nxt(f's_add_u32 s41, s41, 1\ns_cmp_eq_u32 s41, {D}', hm(5, 0))
    nxt(f's_cselect_b32 s43, {(-(D-1)*32768) & 0xffffffff}, s49\ns_cselect_b32 s41, 0, s41', hm(5, 1))
    nxt('v_add_u32 v2, s43, v2\nv_add_u32 v3, s43, v3')
    nxt(hm(6, 0), cv(4, 0), cv(4, 1), hm(6, 1), cv(4, 2), cv(4, 3))
    cur('v_sub_u32 v4, v5, v4')
    nxt(*[cv(5, r) for r in range(4)], *[sw(2, r) for r in range(4)])
    def body(kinds):
        for k, t in S:
            if k in kinds: e(t)
    stamp(e, cfg, 1)
    e('s_waitcnt lgkmcnt(0)\ns_barrier')
    body(('nxt',))
    e('s_waitcnt lgkmcnt(0)')
    e.raw('.p2align 3')
    e.label('L_cloop', keep=True)
    c0, p0 = e.count, e.nops
    e('s_barrier')
    body(('cur', 'nxt'))
    e('s_sub_u32 s42, s42, 1\ns_cmp_lg_u32 s42, 0\ns_waitcnt lgkmcnt(0)\ns_cbranch_scc1 L_cloop')
    print(f'k2 compute loop: {e.count-c0} instructions, {e.nops-p0} pad states', file=sys.stderr)
    e('s_barrier')
    body(('cur',))
    stamp(e, cfg, 2)
    for r in range(16):
        t = 16 + 4 * r
        for jj in range(4): e(f'v_cvt_pk_bf16_f32 v{t+jj}, v{ACC+32*jj+r}, v{ACC+32*jj+16+r}')
        e(f'buffer_store_dwordx4 v[{t}:{t+3}], v6, s[32:35], s40 offen sc1')
        if r < 15: e(f's_add_u32 s40, s40, {32*30*1024}')
    tail(e, name, cfg, 1, 32)
    e.label('L_loader')
    e('s_sub_u32 s36, s3, 4')
    e('v_lshrrev_b32 v7, 3, v0\ns_lshl_b32 s38, s36, 3\nv_add_u32 v2, s38, v7\nv_lshlrev_b32 v2, 20, v2')
    e('v_bfe_u32 v7, v7, 1, 2\nv_lshlrev_b32 v7, 1, v7\nv_and_b32 v8, 7, v0\nv_xor_b32 v7, v7, v8\nv_lshl_add_u32 v2, v7, 4, v2')
    e('s_lshl_b32 s38, s36, 10\nv_lshlrev_b32 v3, 4, v0\nv_add_u32 v3, s38, v3')
    e(f'v_and_b32 v7, 15, v0\nv_mul_u32_u24 v4, 784, v7\nv_lshrrev_b32 v7, 4, v0\ns_lshl_b32 s39, s36, 2\nv_add_u32 v7, s39, v7\nv_lshl_add_u32 v4, v7, 4, v4')
    e(f'v_add_u32 v4, {XBASE}, v4\nv_lshlrev_b32 v5, 1, v4\nv_add_u32 v5, {XSLOT}, v5')
    e(f's_lshl_b32 s44, s27, 14\ns_lshl_b32 s39, s26, 7\ns_add_u32 s44, s44, s39')
    e(f's_mul_i32 s45, s27, 40960\ns_lshl_b32 s39, s23, 13\ns_add_u32 s45, s45, s39')
    if XF_OFF: e(f's_add_u32 s45, s45, {XF_OFF}')
    XR = 16
    def issue(k):
        x = XR + 8 * k
        e(f'buffer_load_dwordx4 v[{x}:{x+3}], v3, s[32:35], s45 offen\ns_add_u32 s46, s45, 4096')
        e(f'buffer_load_dwordx4 v[{x+4}:{x+7}], v3, s[32:35], s46 offen\ns_add_u32 s45, s45, 40960')
        for cj in range(8):
            e(f's_add_u32 m0, s38, {k*32768 + cj*4096}')
            e(f's_add_u32 s46, s44, {cj*2048}')
            e(f'buffer_load_dwordx4 v2, s[16:19], s46 offen {cfg.w_aux} lds')
        e('s_add_u32 s44, s44, 16384')
    for k in range(D - 1): issue(k)
    e(f's_sub_u32 s47, s28, {D-1}\ns_mov_b32 s42, s28\ns_mov_b32 s48, 0x80008000')
    e(f's_waitcnt vmcnt({10*(D-2)})')
    stamp(e, cfg, 1)
    e('s_barrier')
    e.label('L_lloop')
    for i in range(D):
        k = (D - 1 + i) % D; x = XR + 8 * ((k + 1) % D)
        e(f'ds_write_b128 v4, v[{x}:{x+3}]\nds_write_b128 v4, v[{x+4}:{x+7}] offset:256')
        for j in range(4): e(f'v_xor_b32 v{8+j}, s48, v{x+4+j}')
        e('ds_write_b128 v4, v[8:11] offset:512')
        e(f's_sub_i32 s47, s47, 1\ns_cmp_lt_i32 s47, 0\ns_cbranch_scc1 L_ldry{i}')
        issue(k)
        e(f's_waitcnt vmcnt({10*(D-2)})\ns_branch L_ljoin{i}')
        e.label(f'L_ldry{i}')
        for j in range(1, D - 2):
            e(f's_waitcnt vmcnt({10*(D-2-j)})\ns_cmp_eq_i32 s47, {-j}\ns_cbranch_scc1 L_ljoin{i}')
        e('s_waitcnt vmcnt(0)')
        e.label(f'L_ljoin{i}')
        e('s_sub_u32 s42, s42, 1\ns_cmp_eq_u32 s42, 0\ns_waitcnt lgkmcnt(0)\nv_sub_u32 v4, v5, v4\ns_barrier')
        e('s_cbranch_scc1 L_ldone' if i < D - 1 else 's_cbranch_scc0 L_lloop')
    e.label('L_ldone')
    stamp(e, cfg, 2)
    tail(e, name, cfg, 1, 32)
    e.label(f'L_end_{name}'); e('s_endpgm')
    return name, (240, 512, XBASE + 2 * XSLOT), 256

def gate(e, f, g, n, t):
    L2E = 1.4426950408889634
    for i in range(n): e(f'v_mul_f32 v{t+i}, {f32(2*L2E/80)}, v{f+i}\nv_mul_f32 v{g+i}, {f32(-L2E/80)}, v{g+i}')
    for i in range(n): e(f'v_exp_f32 v{t+i}, v{t+i}\nv_exp_f32 v{g+i}, v{g+i}')
    for i in range(n): e(f'v_add_f32 v{t+i}, 1.0, v{t+i}\nv_add_f32 v{g+i}, 1.0, v{g+i}')
    for i in range(n): e(f'v_rcp_f32 v{t+i}, v{t+i}\nv_rcp_f32 v{g+i}, v{g+i}')
    for i in range(n): e(f'v_fma_f32 v{t+i}, v{t+i}, -2.0, 1.0')
    for i in range(n): e(f'v_mul_f32 v{f+i}, v{t+i}, v{g+i}')

def k3a(e, cfg):
    name = 'gate_kernel'
    head(e, name, 256, cfg)
    e('s_lshr_b32 s20, s2, 4\ns_and_b32 s21, s2, 15')
    e('s_and_b32 s22, s3, 1\ns_lshr_b32 s23, s3, 1')
    e('s_lshl_b32 s24, s20, 5\ns_add_u32 s24, s24, s21\ns_lshl_b32 s25, s22, 4\ns_add_u32 s24, s24, s25')
    e(f's_mul_i32 s24, s24, 30\ns_add_u32 s24, s24, s23\ns_lshl_b32 s24, s24, 10\ns_add_u32 s24, s24, {Y_OFF}')
    e('v_lshlrev_b32 v2, 4, v0\ns_lshl_b32 s26, s3, 10')
    e('s_waitcnt lgkmcnt(0)')
    srd(e, 32, 12, WSB)
    for i in range(15):
        e(f's_add_u32 m0, s26, {i*4096}\ns_add_u32 s25, s24, {i*2048}\nbuffer_load_dwordx4 v2, s[32:35], s25 offen lds')
    e(f'v_and_b32 v8, 31, v0\ns_lshl_b32 s27, s3, 5\ns_add_u32 s27, s27, 32\nv_add_u32 v8, s27, v8\nv_cvt_f32_u32 v8, v8\nv_mul_f32 v8, {f32(1/320)}, v8')
    e('v_lshrrev_b32 v9, 5, v0\nv_cvt_f32_u32 v9, v9\nv_mul_f32 v9, 0x3e800000, v9')
    G, A, ACC = 24, 64, 112
    twiddles(e, G, 8, 9, [2 * k + 1 for k in range(80)], 16)
    e(f's_lshl_b32 s28, s20, 2\ns_add_u32 s28, s28, s3\ns_lshl_b32 s28, s28, 5\ns_lshl_b32 s29, s21, 1\ns_add_u32 s28, s28, s29')
    e(f's_lshl_b32 s28, s28, 10\ns_add_u32 s28, s28, {Z_OFF}')
    stamp(e, cfg, 1)
    e('s_waitcnt lgkmcnt(0)')
    for ch in range(5):
        e(f's_waitcnt vmcnt({12-3*ch})\ns_barrier')
        for x in range(12): e(f'ds_read_b128 v[{A+4*x}:{A+4*x+3}], v2 offset:{(12*ch+x)*1024}')
        for x in range(12):
            ph = 12 * ch + x; m, side = ph >> 1, ph & 1; kb = m % 10; c = ACC + 16 * side
            e(f'v_mfma_f32_32x32x16_bf16 v[{c}:{c+15}], v[{A+4*x}:{A+4*x+3}], v[{G+4*kb}:{G+4*kb+3}], ' + ('0' if m == 0 else f'v[{c}:{c+15}]'))
    stamp(e, cfg, 2)
    gate(e, ACC, ACC + 16, 16, A)
    for i in range(8): e(f'v_cvt_pk_bf16_f32 v{16+i}, v{ACC+2*i}, v{ACC+2*i+1}')
    e('buffer_store_dwordx4 v[16:19], v2, s[32:35], s28 offen sc1')
    e('buffer_store_dwordx4 v[20:23], v2, s[32:35], s28 offen offset:1024 sc1')
    tail(e, name, cfg, 2, 32)
    e.label(f'L_end_{name}'); e('s_endpgm')
    return name, (256, 256, 61440), 144

def k3b(e, cfg):
    name = 'proj_kernel'
    head(e, name, 256, cfg)
    e('s_and_b32 s20, s2, 7\ns_lshr_b32 s21, s2, 3\ns_lshl_b32 s20, s20, 2\ns_and_b32 s22, s21, 3\ns_add_u32 s20, s20, s22\ns_lshr_b32 s21, s21, 2')
    e('s_and_b32 s22, s3, 1\ns_lshr_b32 s23, s3, 1')
    e('v_lshrrev_b32 v7, 3, v0\nv_lshlrev_b32 v2, 10, v7\nv_bfe_u32 v7, v7, 1, 1\nv_lshlrev_b32 v7, 2, v7\nv_and_b32 v8, 7, v0\nv_xor_b32 v7, v7, v8\nv_lshl_add_u32 v2, v7, 4, v2')
    e('v_lshlrev_b32 v3, 4, v0')
    e('s_lshl_b32 s24, s3, 15\ns_lshl_b32 s25, s21, 7\ns_add_u32 s24, s24, s25')
    e(f's_lshl_b32 s25, s20, 16\ns_lshl_b32 s26, s23, 15\ns_add_u32 s25, s25, s26\ns_lshl_b32 s26, s22, 12\ns_add_u32 s25, s25, s26\ns_add_u32 s25, s25, {Z_OFF}')
    e('s_lshl_b32 s26, s3, 12')
    e('s_lshl_b32 s27, s23, 15\ns_lshl_b32 s28, s22, 12\ns_add_u32 s27, s27, s28\ns_add_u32 s27, s27, 65536')
    e('s_waitcnt lgkmcnt(0)')
    srd(e, 16, 8, WOB); srd(e, 32, 12, WSB); srd(e, 36, 10, OB)
    for ch in range(4):
        for x in range(4):
            e(f's_add_u32 m0, s27, {(8*ch+x)*1024}\ns_add_u32 s29, s25, {(8*ch+x)*1024}\nbuffer_load_dwordx4 v3, s[32:35], s29 offen lds')
        for x in range(4):
            e(f's_add_u32 m0, s26, {(16*ch+x)*1024}\ns_add_u32 s29, s24, {(16*ch+x)*8192}\nbuffer_load_dwordx4 v2, s[16:19], s29 offen lds')
    e('v_lshrrev_b32 v7, 5, v0\nv_bfe_u32 v8, v0, 2, 2\nv_lshl_add_u32 v7, v7, 2, v8\nv_lshlrev_b32 v4, 7, v7')
    e('v_bfe_u32 v7, v0, 4, 1\nv_and_b32 v8, 1, v0\nv_lshl_add_u32 v7, v7, 1, v8\nv_bfe_u32 v8, v0, 3, 1\nv_xor_b32 v8, s22, v8\nv_lshl_add_u32 v7, v8, 2, v7')
    e('v_lshl_add_u32 v4, v7, 4, v4\nv_bfe_u32 v7, v0, 1, 1\nv_lshl_add_u32 v4, v7, 3, v4')
    e('s_lshl_b32 s28, s23, 15\ns_add_u32 s28, s28, 65536\nv_add_u32 v5, s28, v3')
    e('s_lshr_b32 s28, s20, 4\ns_bfe_u32 s29, s20, 0x10003\ns_and_b32 s30, s20, 7\ns_lshl_b32 s30, s30, 6\ns_lshl_b32 s31, s23, 5\ns_add_u32 s30, s30, s31')
    e('s_mul_i32 s28, s28, 1000\ns_add_u32 s28, s28, s29\ns_lshl_b32 s28, s28, 10\ns_lshl_b32 s29, s21, 7\ns_add_u32 s28, s28, s29\ns_lshl_b32 s29, s22, 6\ns_add_u32 s28, s28, s29')
    e('v_and_b32 v7, 31, v0\nv_add_u32 v7, s30, v7\nv_lshrrev_b32 v8, 5, v0\nv_lshlrev_b32 v8, 4, v8\nv_add_u32 v8, s28, v8\nv_lshl_add_u32 v6, v7, 11, v8')
    e(f'v_mov_b32 v9, {BIG}\ns_movk_i32 s29, 500\nv_cmp_gt_u32 vcc, s29, v7\nv_cndmask_b32 v6, v9, v6, vcc')
    A, Bz, ACC = 16, 48, 80
    stamp(e, cfg, 1)
    e('s_waitcnt lgkmcnt(0)')
    for ch in range(4):
        e(f's_waitcnt vmcnt({24-8*ch})\ns_barrier')
        def rd(x):
            ks = 8 * ch + x
            for h in range(2): e(f'ds_read_b64_tr_b16 v[{A+4*x+2*h}:{A+4*x+2*h+1}], v4 offset:{ks*2048+h*1024}')
            e(f'ds_read_b128 v[{Bz+4*x}:{Bz+4*x+3}], v5 offset:{ks*1024}')
        for x in range(4): rd(x)
        for x in range(8):
            e(f'v_mfma_f32_32x32x16_bf16 v[{ACC}:{ACC+15}], v[{A+4*x}:{A+4*x+3}], v[{Bz+4*x}:{Bz+4*x+3}], ' + ('0' if ch == 0 and x == 0 else f'v[{ACC}:{ACC+15}]'))
            if x + 4 < 8: rd(x + 4)
    stamp(e, cfg, 2)
    for i in range(8): e(f'v_cvt_pk_bf16_f32 v{16+i}, v{ACC+2*i}, v{ACC+2*i+1}')
    e('buffer_store_dwordx4 v[16:19], v6, s[36:39], 0 offen')
    e('buffer_store_dwordx4 v[20:23], v6, s[36:39], 0 offen offset:32')
    tail(e, name, cfg, 3, 32)
    e.label(f'L_end_{name}'); e('s_endpgm')
    return name, (256, 256, 131072), 96

def generate(path, cfg):
    e = Emit()
    ks = [k(e, cfg) for k in (k1, k2, k3a, k3b)]
    if getattr(cfg, 'empty', 0):
        e.raw('.globl nop_kernel\n.p2align 8\n.type nop_kernel,@function'); e.label('nop_kernel'); e('s_endpgm')
    hdr = [f'; @launch kernel={n} grid=({g},1,1) block=({b},1,1) lds={l}' for n, (g, b, l), _ in ks]
    if getattr(cfg, 'empty', 0):
        hdr += ['; @launch kernel=nop_kernel grid=(256,1,1) block=(256,1,1) lds=0'] * cfg.empty
        ks.append(('nop_kernel', None, 8))
    if getattr(cfg, 'twice', None) is not None: hdr.insert(cfg.twice, hdr[cfg.twice])
    out = '\n'.join(hdr) + '\n.amdgcn_target "amdgcn-amd-amdhsa--gfx950"\n.text\n' + e.text() + '.section .rodata,"a"\n'
    out += '\n'.join(kernel_desc(n, v) for n, _, v in ks) + '\n'
    open(path, 'w').write(out)

if __name__ == '__main__':
    kw = {}
    for a in sys.argv[2:]:
        k, v = a.split('=', 1); kw[k] = eval(v)
    generate(sys.argv[1], Cfg(**kw))
```

```python
import sys, struct
from emit import Emit, kernel_desc

XB, WB, WOB, OB, WSB = 2048000, 31 * 512 * 1024 * 2, 512 * 512 * 2, 2048000, 256 << 20
XF_OFF, Y_OFF, Z_OFF, STAMP_OFF = 0, 4 << 20, 24 << 20, 128 << 20
BIG = 0x7ff00000
def f32(x): return '0x%08x' % struct.unpack('<I', struct.pack('<f', x))[0]

class Cfg:
    stamps = False
    D = 4
    w_aux = 'nt'
    x_aux = 'nt'
    splits = (22, 21, 21)
    def __init__(self, **kw): self.__dict__.update(kw)

def srd(e, d, base, nbytes):
    e(f's_mov_b32 s{d}, s{base}\ns_mov_b32 s{d+1}, s{base+1}\ns_mov_b32 s{d+2}, {nbytes}\ns_mov_b32 s{d+3}, 0x00020000')

def head(e, name, nwg, cfg):
    e.raw(f'.globl {name}\n.p2align 8\n.type {name},@function')
    e.label(name)
    e(f's_cmp_ge_u32 s2, {nwg}\ns_cbranch_scc1 L_end_{name}')
    if cfg.stamps: e('s_memrealtime s[80:81]')
    e('s_load_dwordx4 s[4:7], s[0:1], 0\ns_load_dwordx4 s[8:11], s[0:1], 16\ns_load_dwordx2 s[12:13], s[0:1], 40')
    e('v_lshrrev_b32 v1, 6, v0\nv_and_b32 v0, 63, v0\nv_readfirstlane_b32 s3, v1')

def stamp(e, cfg, k):
    if cfg.stamps: e(f's_memrealtime s[{80+2*k}:{81+2*k}]')

def tail(e, name, cfg, slot, ws):
    if cfg.stamps:
        e('s_waitcnt vmcnt(0)\ns_memrealtime s[86:87]\ns_waitcnt lgkmcnt(0)')
        e('v_mov_b32 v8, s80\nv_mov_b32 v9, s82\nv_mov_b32 v10, s84\nv_mov_b32 v11, s86')
        e(f's_lshl_b32 s88, s2, 3\ns_add_u32 s88, s88, s3\ns_lshl_b32 s88, s88, 4\ns_add_u32 s88, s88, {STAMP_OFF + slot * 65536}')
        e(f'v_mov_b32 v6, 0\nbuffer_store_dwordx4 v[8:11], v6, s[{ws}:{ws+3}], s88 offen')
    e('s_endpgm')

def twiddles(e, dst, mul, base, consts, tmp):
    for i0 in range(0, len(consts), 8):
        for j in range(8): e(f'v_fmamk_f32 v{tmp+j}, v{mul}, {f32(consts[i0+j])}, v{base}')
        for j in range(8): e(f'v_cos_f32 v{tmp+j}, v{tmp+j}')
        for j in range(0, 8, 2): e(f'v_cvt_pk_bf16_f32 v{dst+(i0+j)//2}, v{tmp+j}, v{tmp+j+1}')

def k1(e, cfg):
    name = 'xdft_kernel'
    head(e, name, 256, cfg)
    e('s_lshr_b32 s20, s2, 4')
    e('s_and_b32 s21, s2, 7\ns_lshl_b32 s21, s21, 1\ns_bfe_u32 s22, s2, 0x10003\ns_add_u32 s21, s21, s22')
    e('s_lshr_b32 s23, s20, 3\ns_bfe_u32 s24, s20, 0x10002\ns_and_b32 s25, s20, 3')
    e('s_lshl_b32 s26, s25, 7\ns_lshl_b32 s27, s3, 5\ns_add_u32 s26, s26, s27\ns_sub_u32 s26, s26, 32')
    e('s_mul_i32 s27, s23, 1000\ns_add_u32 s27, s27, s24\ns_lshl_b32 s27, s27, 10\ns_lshl_b32 s28, s21, 6\ns_add_u32 s27, s27, s28')
    e('v_lshrrev_b32 v2, 2, v0\nv_add_u32 v2, s26, v2')
    e('v_and_b32 v3, 3, v0\nv_lshlrev_b32 v3, 4, v3\nv_add_u32 v3, s27, v3')
    e(f'v_mov_b32 v7, {BIG}\ns_movk_i32 s29, 500')
    e('v_lshl_add_u32 v4, v2, 11, v3\nv_cmp_gt_u32 vcc, s29, v2\nv_cndmask_b32 v4, v7, v4, vcc')
    e('v_add_u32 v2, 16, v2\nv_lshl_add_u32 v5, v2, 11, v3\nv_cmp_gt_u32 vcc, s29, v2\nv_cndmask_b32 v5, v7, v5, vcc')
    e('s_waitcnt lgkmcnt(0)')
    srd(e, 16, 4, XB); srd(e, 32, 12, WSB)
    e('s_lshl_b32 s28, s3, 11\ns_mov_b32 m0, s28')
    e(f'buffer_load_dwordx4 v4, s[16:19], 0 offen {cfg.x_aux} lds')
    e('s_add_u32 m0, s28, 1024')
    e(f'buffer_load_dwordx4 v5, s[16:19], 0 offen {cfg.x_aux} lds')
    e('v_and_b32 v8, 15, v0\ns_lshl_b32 s28, s3, 4\nv_add_u32 v8, s28, v8\nv_lshl_add_u32 v8, v8, 1, 1\nv_cvt_f32_u32 v8, v8')
    e(f'v_mul_f32 v8, {f32(1/320)}, v8')
    e('v_bfe_u32 v9, v0, 4, 1\nv_cvt_f32_u32 v9, v9\nv_mul_f32 v9, 0x3e800000, v9')
    e('v_lshrrev_b32 v10, 5, v0\nv_lshlrev_b32 v10, 3, v10\nv_cvt_f32_u32 v10, v10\nv_fma_f32 v9, v8, v10, v9')
    FB, AB, DB = 24, 64, 104
    twiddles(e, FB, 8, 9, [16 * kk + j for kk in range(10) for j in range(8)], 16)
    e('v_lshrrev_b32 v10, 5, v0\nv_bfe_u32 v11, v0, 2, 2\nv_lshl_add_u32 v10, v10, 3, v11\nv_lshlrev_b32 v10, 6, v10')
    e('v_bfe_u32 v11, v0, 4, 1\nv_lshl_add_u32 v10, v11, 5, v10')
    e('v_and_b32 v11, 1, v0\nv_lshl_add_u32 v10, v11, 4, v10\nv_bfe_u32 v11, v0, 1, 1\nv_lshl_add_u32 v10, v11, 3, v10')
    e('v_lshrrev_b32 v12, 5, v0\nv_mul_u32_u24 v12, 40960, v12\nv_bfe_u32 v11, v0, 4, 1\nv_lshl_add_u32 v12, v11, 12, v12')
    e('v_and_b32 v11, 15, v0\nv_lshl_add_u32 v12, v11, 4, v12')
    e(f's_mul_i32 s28, s21, {4*40960}\ns_lshl_b32 s30, s3, 13\ns_add_u32 s28, s28, s30\ns_lshl_b32 s30, s20, 8\ns_add_u32 s28, s28, s30')
    if XF_OFF: e(f's_add_u32 s28, s28, {XF_OFF}')
    e(f's_add_u32 s30, s28, {2*40960}')
    stamp(e, cfg, 1)
    e('s_waitcnt vmcnt(0) lgkmcnt(0)\ns_barrier')
    def rd(kk):
        for h in range(2): e(f'ds_read_b64_tr_b16 v[{AB+4*kk+2*h}:{AB+4*kk+2*h+1}], v10 offset:{kk*1024+h*256}')
    for kk in range(6): rd(kk)
    for kk in range(10):
        c = '0' if kk == 0 else f'v[{DB}:{DB+15}]'
        e(f'v_mfma_f32_32x32x16_bf16 v[{DB}:{DB+15}], v[{AB+4*kk}:{AB+4*kk+3}], v[{FB+4*kk}:{FB+4*kk+3}], {c}')
        if kk + 6 < 10: rd(kk + 6)
    for i in range(8): e(f'v_cvt_pk_bf16_f32 v{16+i}, v{DB+2*i}, v{DB+2*i+1}')
    stamp(e, cfg, 2)
    e('buffer_store_dwordx4 v[16:19], v12, s[32:35], s28 offen sc1')
    e('buffer_store_dwordx4 v[20:23], v12, s[32:35], s30 offen sc1')
    tail(e, name, cfg, 0, 32)
    e.label(f'L_end_{name}'); e('s_endpgm')
    return name, (256, 320, 10240), 120

XSLOT = 16 * 784
def k2(e, cfg):
    name = 'spec_kernel'
    D = cfg.D; XBASE = D * 32768
    n0, n1, n2 = cfg.splits
    head(e, name, 240, cfg)
    e('s_and_b32 s20, s2, 7\ns_lshr_b32 s21, s2, 3')
    e('s_mul_i32 s22, s21, 52\ns_lshr_b32 s22, s22, 8\ns_mul_i32 s23, s22, 5\ns_sub_u32 s23, s21, s23')
    e('s_mul_i32 s24, s20, 6\ns_add_u32 s24, s24, s22\ns_lshr_b32 s25, s24, 4\ns_and_b32 s26, s24, 15')
    e(f's_mov_b32 s27, 0\ns_mov_b32 s28, {n0}')
    e(f's_cmp_eq_u32 s25, 1\ns_cselect_b32 s27, {n0}, s27\ns_cselect_b32 s28, {n1}, s28')
    e(f's_cmp_eq_u32 s25, 2\ns_cselect_b32 s27, {n0+n1}, s27\ns_cselect_b32 s28, {n2}, s28')
    e('s_waitcnt lgkmcnt(0)')
    srd(e, 16, 6, WB); srd(e, 32, 12, WSB)
    e('s_cmp_ge_u32 s3, 4\ns_cbranch_scc1 L_loader')
    ACC, B, DD, W, A, F = 128, 96, 64, 32, 16, 12
    e('s_and_b32 s36, s3, 1\ns_lshr_b32 s37, s3, 1')
    e('v_and_b32 v8, 7, v0\ns_lshl_b32 s38, s23, 4\ns_lshl_b32 s39, s37, 3\ns_add_u32 s38, s38, s39\nv_add_u32 v8, s38, v8')
    e(f'v_lshl_add_u32 v8, v8, 1, 1\nv_cvt_f32_u32 v8, v8\nv_mul_f32 v8, {f32(1/320)}, v8')
    e('v_bfe_u32 v9, v0, 3, 1\nv_cvt_f32_u32 v9, v9\nv_mul_f32 v9, 0x3e800000, v9')
    e('v_lshrrev_b32 v10, 5, v0\nv_bfe_u32 v11, v0, 4, 1\nv_lshlrev_b32 v10, 4, v10\nv_lshl_add_u32 v10, v11, 2, v10')
    e('v_cvt_f32_u32 v7, v10\nv_fma_f32 v9, v8, v7, v9')
    twiddles(e, F, 8, 9, [0, 1, 2, 3, 8, 9, 10, 11], 16)
    e('v_bfe_u32 v7, v0, 2, 2\nv_add_u32 v10, v10, v7\nv_lshlrev_b32 v2, 7, v10')
    e('v_bfe_u32 v10, v10, 1, 2\ns_lshl_b32 s38, s36, 1\nv_xor_b32 v10, s38, v10\nv_lshl_add_u32 v2, v10, 5, v2')
    e('v_and_b32 v7, 3, v0\nv_lshl_add_u32 v2, v7, 3, v2\nv_xor_b32 v3, 32, v2')
    e('v_bfe_u32 v7, v0, 2, 1\nv_lshrrev_b32 v10, 5, v0\nv_xor_b32 v11, v7, v10\nv_lshlrev_b32 v11, v10, v11\nv_lshlrev_b32 v4, 8, v11')
    e('v_and_b32 v7, 3, v0\nv_bfe_u32 v10, v0, 3, 2\nv_lshl_add_u32 v7, v10, 2, v7\nv_lshl_add_u32 v4, v7, 4, v4')
    e(f's_mul_i32 s38, s37, {8*784}\ns_add_u32 s38, s38, {XBASE}\nv_add_u32 v4, s38, v4')
    e(f'v_lshlrev_b32 v5, 1, v4\nv_add_u32 v5, {XSLOT}, v5')
    e('v_lshlrev_b32 v6, 4, v0')
    e(f's_lshl_b32 s40, s26, 1\ns_add_u32 s40, s40, s36\ns_mul_i32 s40, s40, 3\ns_add_u32 s40, s40, s25\ns_mul_i32 s40, s40, 10')
    e(f's_lshl_b32 s38, s23, 1\ns_add_u32 s38, s38, s37\ns_add_u32 s40, s40, s38\ns_lshl_b32 s40, s40, 10\ns_add_u32 s40, s40, {Y_OFF}')
    for i in range(128): e(f'v_mov_b32 v{ACC+i}, 0')
    e('s_mov_b32 s41, 0\ns_sub_u32 s42, s28, 1\ns_mov_b32 s49, 32768')

    def tr(m, j):
        p, u = m >> 1, m & 1; cc, h = j >> 1, j & 1; r = W + 8 * (m % 4) + 4 * cc + 2 * h
        return f'ds_read_b64_tr_b16 v[{r}:{r+1}], v{2+u} offset:{(2*p+cc)*4096 + h*1024}'
    def hm(m, cc):
        d = DD + 8 * (m % 4) + 4 * cc; w = W + 8 * (m % 4) + 4 * cc
        return f'v_mfma_f32_16x16x32_bf16 v[{d}:{d+3}], v[{F}:{F+3}], v[{w}:{w+3}], 0'
    def cv(m, r):
        p, u = m >> 1, m & 1; d = DD + 8 * (m % 4)
        return f'v_cvt_pk_bf16_f32 v{B+4*(r+4*u)+p}, v{d+r}, v{d+4+r}'
    def sw(p, r): return f'v_permlane16_swap_b32 v{B+4*r+p}, v{B+4*(r+4)+p}'
    GO = [0, 4, 1, 5, 2, 6, 3, 7]
    def ra(i):
        a = A + 4 * (GO.index(i) % 4)
        return f'ds_read_b128 v[{a}:{a+3}], v4 offset:{i*784}'
    def gm(i):
        a = A + 4 * (GO.index(i) % 4); c = ACC + 16 * i
        return f'v_mfma_f32_32x32x16_bf16 v[{c}:{c+15}], v[{a}:{a+3}], v[{B+4*i}:{B+4*i+3}], v[{c}:{c+15}]'
    S = []
    cur = lambda *x: S.extend(('cur', t) for t in x)
    nxt = lambda *x: S.extend(('nxt', t) for t in x)
    cur(hm(7, 0), ra(0), ra(4), hm(7, 1), ra(1), ra(5), *[cv(6, r) for r in range(4)])
    nxt(*[tr(0, j) for j in range(4)])
    cur(*[cv(7, r) for r in range(4)])
    nxt(tr(1, 0), tr(1, 1)); cur(sw(3, 0), sw(3, 1)); nxt(tr(1, 2), tr(1, 3))
    cur(gm(0), sw(3, 2), sw(3, 3)); nxt(*[tr(2, j) for j in range(4)])
    cur(gm(4), ra(2)); nxt(*[tr(3, j) for j in range(4)]); cur(ra(6))
    nxt(hm(0, 0), hm(0, 1))
    cur(gm(1), ra(3)); nxt(*[tr(4, j) for j in range(4)])
    nxt(hm(1, 0), cv(0, 0), hm(1, 1), cv(0, 1))
    cur(gm(5), ra(7)); nxt(*[tr(5, j) for j in range(4)])
    nxt(hm(2, 0), hm(2, 1))
    cur(gm(2)); nxt(cv(1, 0), cv(1, 1), cv(0, 2), cv(2, 0), sw(0, 0), sw(0, 1))
    nxt(hm(3, 0), tr(6, 0), tr(6, 1), hm(3, 1), tr(6, 2), tr(6, 3))
    cur(gm(6)); nxt(cv(1, 2), cv(2, 1), cv(2, 2), tr(7, 0), tr(7, 1), sw(0, 2))
    cur(gm(3)); nxt(cv(0, 3), cv(3, 0), cv(3, 1), cv(2, 3), tr(7, 2), tr(7, 3))
    cur(gm(7)); nxt(cv(1, 3), cv(3, 2), cv(3, 3), sw(1, 0), sw(0, 3), sw(1, 1))
    nxt(hm(4, 0), sw(1, 2), sw(1, 3), hm(4, 1))
    nxt(f's_add_u32 s41, s41, 1\ns_cmp_eq_u32 s41, {D}', hm(5, 0))
    nxt(f's_cselect_b32 s43, {(-(D-1)*32768) & 0xffffffff}, s49\ns_cselect_b32 s41, 0, s41', hm(5, 1))
    nxt('v_add_u32 v2, s43, v2\nv_add_u32 v3, s43, v3')
    nxt(hm(6, 0), cv(4, 0), cv(4, 1), hm(6, 1), cv(4, 2), cv(4, 3))
    cur('v_sub_u32 v4, v5, v4')
    nxt(*[cv(5, r) for r in range(4)], *[sw(2, r) for r in range(4)])
    def body(kinds):
        for k, t in S:
            if k in kinds: e(t)
    stamp(e, cfg, 1)
    e('s_waitcnt lgkmcnt(0)\ns_barrier')
    body(('nxt',))
    e('s_waitcnt lgkmcnt(0)')
    e.raw('.p2align 3')
    e.label('L_cloop', keep=True)
    c0, p0 = e.count, e.nops
    e('s_barrier')
    body(('cur', 'nxt'))
    e('s_sub_u32 s42, s42, 1\ns_cmp_lg_u32 s42, 0\ns_waitcnt lgkmcnt(0)\ns_cbranch_scc1 L_cloop')
    print(f'k2 compute loop: {e.count-c0} instructions, {e.nops-p0} pad states', file=sys.stderr)
    e('s_barrier')
    body(('cur',))
    stamp(e, cfg, 2)
    for r in range(16):
        t = 16 + 4 * r
        for jj in range(4): e(f'v_cvt_pk_bf16_f32 v{t+jj}, v{ACC+32*jj+r}, v{ACC+32*jj+16+r}')
        e(f'buffer_store_dwordx4 v[{t}:{t+3}], v6, s[32:35], s40 offen sc1')
        if r < 15: e(f's_add_u32 s40, s40, {32*30*1024}')
    tail(e, name, cfg, 1, 32)
    e.label('L_loader')
    e('s_sub_u32 s36, s3, 4')
    e('v_lshrrev_b32 v7, 3, v0\ns_lshl_b32 s38, s36, 3\nv_add_u32 v2, s38, v7\nv_lshlrev_b32 v2, 20, v2')
    e('v_bfe_u32 v7, v7, 1, 2\nv_lshlrev_b32 v7, 1, v7\nv_and_b32 v8, 7, v0\nv_xor_b32 v7, v7, v8\nv_lshl_add_u32 v2, v7, 4, v2')
    e('s_lshl_b32 s38, s36, 10\nv_lshlrev_b32 v3, 4, v0\nv_add_u32 v3, s38, v3')
    e(f'v_and_b32 v7, 15, v0\nv_mul_u32_u24 v4, 784, v7\nv_lshrrev_b32 v7, 4, v0\ns_lshl_b32 s39, s36, 2\nv_add_u32 v7, s39, v7\nv_lshl_add_u32 v4, v7, 4, v4')
    e(f'v_add_u32 v4, {XBASE}, v4\nv_lshlrev_b32 v5, 1, v4\nv_add_u32 v5, {XSLOT}, v5')
    e(f's_lshl_b32 s44, s27, 14\ns_lshl_b32 s39, s26, 7\ns_add_u32 s44, s44, s39')
    e(f's_mul_i32 s45, s27, 40960\ns_lshl_b32 s39, s23, 13\ns_add_u32 s45, s45, s39')
    if XF_OFF: e(f's_add_u32 s45, s45, {XF_OFF}')
    XR = 16
    def issue(k):
        x = XR + 8 * k
        e(f'buffer_load_dwordx4 v[{x}:{x+3}], v3, s[32:35], s45 offen\ns_add_u32 s46, s45, 4096')
        e(f'buffer_load_dwordx4 v[{x+4}:{x+7}], v3, s[32:35], s46 offen\ns_add_u32 s45, s45, 40960')
        for cj in range(8):
            e(f's_add_u32 m0, s38, {k*32768 + cj*4096}')
            e(f's_add_u32 s46, s44, {cj*2048}')
            e(f'buffer_load_dwordx4 v2, s[16:19], s46 offen {cfg.w_aux} lds')
        e('s_add_u32 s44, s44, 16384')
    for k in range(D - 1): issue(k)
    e(f's_sub_u32 s47, s28, {D-1}\ns_mov_b32 s42, s28\ns_mov_b32 s48, 0x80008000')
    e(f's_waitcnt vmcnt({10*(D-2)})')
    stamp(e, cfg, 1)
    e('s_barrier')
    e.label('L_lloop')
    for i in range(D):
        k = (D - 1 + i) % D; x = XR + 8 * ((k + 1) % D)
        e(f'ds_write_b128 v4, v[{x}:{x+3}]\nds_write_b128 v4, v[{x+4}:{x+7}] offset:256')
        for j in range(4): e(f'v_xor_b32 v{8+j}, s48, v{x+4+j}')
        e('ds_write_b128 v4, v[8:11] offset:512')
        e(f's_sub_i32 s47, s47, 1\ns_cmp_lt_i32 s47, 0\ns_cbranch_scc1 L_ldry{i}')
        issue(k)
        e(f's_waitcnt vmcnt({10*(D-2)})\ns_branch L_ljoin{i}')
        e.label(f'L_ldry{i}')
        for j in range(1, D - 2):
            e(f's_waitcnt vmcnt({10*(D-2-j)})\ns_cmp_eq_i32 s47, {-j}\ns_cbranch_scc1 L_ljoin{i}')
        e('s_waitcnt vmcnt(0)')
        e.label(f'L_ljoin{i}')
        e('s_sub_u32 s42, s42, 1\ns_cmp_eq_u32 s42, 0\ns_waitcnt lgkmcnt(0)\nv_sub_u32 v4, v5, v4\ns_barrier')
        e('s_cbranch_scc1 L_ldone' if i < D - 1 else 's_cbranch_scc0 L_lloop')
    e.label('L_ldone')
    stamp(e, cfg, 2)
    tail(e, name, cfg, 1, 32)
    e.label(f'L_end_{name}'); e('s_endpgm')
    return name, (240, 512, XBASE + 2 * XSLOT), 256

def gate(e, f, g, n, t):
    L2E = 1.4426950408889634
    for i in range(n): e(f'v_mul_f32 v{t+i}, {f32(2*L2E/80)}, v{f+i}\nv_mul_f32 v{g+i}, {f32(-L2E/80)}, v{g+i}')
    for i in range(n): e(f'v_exp_f32 v{t+i}, v{t+i}\nv_exp_f32 v{g+i}, v{g+i}')
    for i in range(n): e(f'v_add_f32 v{t+i}, 1.0, v{t+i}\nv_add_f32 v{g+i}, 1.0, v{g+i}')
    for i in range(n): e(f'v_rcp_f32 v{t+i}, v{t+i}\nv_rcp_f32 v{g+i}, v{g+i}')
    for i in range(n): e(f'v_fma_f32 v{t+i}, v{t+i}, -2.0, 1.0')
    for i in range(n): e(f'v_mul_f32 v{f+i}, v{t+i}, v{g+i}')

def k3a(e, cfg):
    name = 'gate_kernel'
    head(e, name, 256, cfg)
    e('s_lshr_b32 s20, s2, 4\ns_and_b32 s21, s2, 15')
    e('s_and_b32 s22, s3, 1\ns_lshr_b32 s23, s3, 1')
    e('s_lshl_b32 s24, s20, 5\ns_add_u32 s24, s24, s21\ns_lshl_b32 s25, s22, 4\ns_add_u32 s24, s24, s25')
    e(f's_mul_i32 s24, s24, 30\ns_add_u32 s24, s24, s23\ns_lshl_b32 s24, s24, 10\ns_add_u32 s24, s24, {Y_OFF}')
    e('v_lshlrev_b32 v2, 4, v0\ns_lshl_b32 s26, s3, 10')
    e('s_waitcnt lgkmcnt(0)')
    srd(e, 32, 12, WSB)
    for i in range(15):
        e(f's_add_u32 m0, s26, {i*4096}\ns_add_u32 s25, s24, {i*2048}\nbuffer_load_dwordx4 v2, s[32:35], s25 offen lds')
    e(f'v_and_b32 v8, 31, v0\ns_lshl_b32 s27, s3, 5\ns_add_u32 s27, s27, 32\nv_add_u32 v8, s27, v8\nv_cvt_f32_u32 v8, v8\nv_mul_f32 v8, {f32(1/320)}, v8')
    e('v_lshrrev_b32 v9, 5, v0\nv_cvt_f32_u32 v9, v9\nv_mul_f32 v9, 0x3e800000, v9')
    G, A, ACC = 24, 64, 112
    twiddles(e, G, 8, 9, [2 * k + 1 for k in range(80)], 16)
    e(f's_lshl_b32 s28, s20, 2\ns_add_u32 s28, s28, s3\ns_lshl_b32 s28, s28, 5\ns_lshl_b32 s29, s21, 1\ns_add_u32 s28, s28, s29')
    e(f's_lshl_b32 s28, s28, 10\ns_add_u32 s28, s28, {Z_OFF}')
    stamp(e, cfg, 1)
    e('s_waitcnt lgkmcnt(0)')
    for ch in range(5):
        e(f's_waitcnt vmcnt({12-3*ch})\ns_barrier')
        for x in range(12): e(f'ds_read_b128 v[{A+4*x}:{A+4*x+3}], v2 offset:{(12*ch+x)*1024}')
        for x in range(12):
            ph = 12 * ch + x; m, side = ph >> 1, ph & 1; kb = m % 10; c = ACC + 16 * side
            e(f'v_mfma_f32_32x32x16_bf16 v[{c}:{c+15}], v[{A+4*x}:{A+4*x+3}], v[{G+4*kb}:{G+4*kb+3}], ' + ('0' if m == 0 else f'v[{c}:{c+15}]'))
    stamp(e, cfg, 2)
    gate(e, ACC, ACC + 16, 16, A)
    for i in range(8): e(f'v_cvt_pk_bf16_f32 v{16+i}, v{ACC+2*i}, v{ACC+2*i+1}')
    e('buffer_store_dwordx4 v[16:19], v2, s[32:35], s28 offen sc1')
    e('buffer_store_dwordx4 v[20:23], v2, s[32:35], s28 offen offset:1024 sc1')
    tail(e, name, cfg, 2, 32)
    e.label(f'L_end_{name}'); e('s_endpgm')
    return name, (256, 256, 61440), 144

def k3b(e, cfg):
    name = 'proj_kernel'
    head(e, name, 256, cfg)
    e('s_and_b32 s20, s2, 7\ns_lshr_b32 s21, s2, 3\ns_lshl_b32 s20, s20, 2\ns_and_b32 s22, s21, 3\ns_add_u32 s20, s20, s22\ns_lshr_b32 s21, s21, 2')
    e('s_and_b32 s22, s3, 1\ns_lshr_b32 s23, s3, 1')
    e('v_lshrrev_b32 v7, 3, v0\nv_lshlrev_b32 v2, 10, v7\nv_bfe_u32 v7, v7, 1, 1\nv_lshlrev_b32 v7, 2, v7\nv_and_b32 v8, 7, v0\nv_xor_b32 v7, v7, v8\nv_lshl_add_u32 v2, v7, 4, v2')
    e('v_lshlrev_b32 v3, 4, v0')
    e('s_lshl_b32 s24, s3, 15\ns_lshl_b32 s25, s21, 7\ns_add_u32 s24, s24, s25')
    e(f's_lshl_b32 s25, s20, 16\ns_lshl_b32 s26, s23, 15\ns_add_u32 s25, s25, s26\ns_lshl_b32 s26, s22, 12\ns_add_u32 s25, s25, s26\ns_add_u32 s25, s25, {Z_OFF}')
    e('s_lshl_b32 s26, s3, 12')
    e('s_lshl_b32 s27, s23, 15\ns_lshl_b32 s28, s22, 12\ns_add_u32 s27, s27, s28\ns_add_u32 s27, s27, 65536')
    e('s_waitcnt lgkmcnt(0)')
    srd(e, 16, 8, WOB); srd(e, 32, 12, WSB); srd(e, 36, 10, OB)
    for ch in range(4):
        for x in range(4):
            e(f's_add_u32 m0, s27, {(8*ch+x)*1024}\ns_add_u32 s29, s25, {(8*ch+x)*1024}\nbuffer_load_dwordx4 v3, s[32:35], s29 offen lds')
        for x in range(4):
            e(f's_add_u32 m0, s26, {(16*ch+x)*1024}\ns_add_u32 s29, s24, {(16*ch+x)*8192}\nbuffer_load_dwordx4 v2, s[16:19], s29 offen lds')
    e('v_lshrrev_b32 v7, 5, v0\nv_bfe_u32 v8, v0, 2, 2\nv_lshl_add_u32 v7, v7, 2, v8\nv_lshlrev_b32 v4, 7, v7')
    e('v_bfe_u32 v7, v0, 4, 1\nv_and_b32 v8, 1, v0\nv_lshl_add_u32 v7, v7, 1, v8\nv_bfe_u32 v8, v0, 3, 1\nv_xor_b32 v8, s22, v8\nv_lshl_add_u32 v7, v8, 2, v7')
    e('v_lshl_add_u32 v4, v7, 4, v4\nv_bfe_u32 v7, v0, 1, 1\nv_lshl_add_u32 v4, v7, 3, v4')
    e('s_lshl_b32 s28, s23, 15\ns_add_u32 s28, s28, 65536\nv_add_u32 v5, s28, v3')
    e('s_lshr_b32 s28, s20, 4\ns_bfe_u32 s29, s20, 0x10003\ns_and_b32 s30, s20, 7\ns_lshl_b32 s30, s30, 6\ns_lshl_b32 s31, s23, 5\ns_add_u32 s30, s30, s31')
    e('s_mul_i32 s28, s28, 1000\ns_add_u32 s28, s28, s29\ns_lshl_b32 s28, s28, 10\ns_lshl_b32 s29, s21, 7\ns_add_u32 s28, s28, s29\ns_lshl_b32 s29, s22, 6\ns_add_u32 s28, s28, s29')
    e('v_and_b32 v7, 31, v0\nv_add_u32 v7, s30, v7\nv_lshrrev_b32 v8, 5, v0\nv_lshlrev_b32 v8, 4, v8\nv_add_u32 v8, s28, v8\nv_lshl_add_u32 v6, v7, 11, v8')
    e(f'v_mov_b32 v9, {BIG}\ns_movk_i32 s29, 500\nv_cmp_gt_u32 vcc, s29, v7\nv_cndmask_b32 v6, v9, v6, vcc')
    A, Bz, ACC = 16, 48, 80
    stamp(e, cfg, 1)
    e('s_waitcnt lgkmcnt(0)')
    for ch in range(4):
        e(f's_waitcnt vmcnt({24-8*ch})\ns_barrier')
        def rd(x):
            ks = 8 * ch + x
            for h in range(2): e(f'ds_read_b64_tr_b16 v[{A+4*x+2*h}:{A+4*x+2*h+1}], v4 offset:{ks*2048+h*1024}')
            e(f'ds_read_b128 v[{Bz+4*x}:{Bz+4*x+3}], v5 offset:{ks*1024}')
        for x in range(4): rd(x)
        for x in range(8):
            e(f'v_mfma_f32_32x32x16_bf16 v[{ACC}:{ACC+15}], v[{A+4*x}:{A+4*x+3}], v[{Bz+4*x}:{Bz+4*x+3}], ' + ('0' if ch == 0 and x == 0 else f'v[{ACC}:{ACC+15}]'))
            if x + 4 < 8: rd(x + 4)
    stamp(e, cfg, 2)
    for i in range(8): e(f'v_cvt_pk_bf16_f32 v{16+i}, v{ACC+2*i}, v{ACC+2*i+1}')
    e('buffer_store_dwordx4 v[16:19], v6, s[36:39], 0 offen')
    e('buffer_store_dwordx4 v[20:23], v6, s[36:39], 0 offen offset:32')
    tail(e, name, cfg, 3, 32)
    e.label(f'L_end_{name}'); e('s_endpgm')
    return name, (256, 256, 131072), 96

def diag(e, cfg):
    (sa, fa), (sb, fb), mult = cfg.diag
    name = 'diag_kernel'
    e.raw(f'.globl {name}\n.p2align 8\n.type {name},@function'); e.label(name)
    e(f's_cmp_ge_u32 s2, 1\ns_cbranch_scc1 L_end_{name}')
    e('s_memrealtime s[20:21]\ns_load_dwordx2 s[12:13], s[0:1], 40\ns_waitcnt lgkmcnt(0)')
    srd(e, 32, 12, WSB)
    e(f'v_mov_b32 v1, {STAMP_OFF + sa * 65536 + fa * 4}\nv_mov_b32 v2, {STAMP_OFF + max(sb, 0) * 65536 + fb * 4}')
    e('buffer_load_dword v3, v1, s[32:35], 0 offen sc1\nbuffer_load_dword v4, v2, s[32:35], 0 offen sc1\ns_waitcnt vmcnt(0)')
    e('v_readfirstlane_b32 s22, v3\nv_readfirstlane_b32 s23, v4\ns_nop 3')
    if sb < 0: e('s_mov_b32 s23, s20')
    e(f's_sub_u32 s22, s23, s22\ns_min_u32 s22, s22, 20000\ns_mul_i32 s22, s22, {mult}')
    e.label('L_diag')
    e('s_memrealtime s[24:25]\ns_waitcnt lgkmcnt(0)\ns_sub_u32 s24, s24, s20\ns_cmp_lt_u32 s24, s22\ns_cbranch_scc1 L_diag')
    e.label(f'L_end_{name}'); e('s_endpgm')
    return name, (1, 64, 0), 8

def generate(path, cfg):
    e = Emit()
    ks = [k(e, cfg) for k in (k1, k2, k3a, k3b)]
    if getattr(cfg, 'diag', None): ks.append(diag(e, cfg))
    if getattr(cfg, 'empty', 0):
        e.raw('.globl nop_kernel\n.p2align 8\n.type nop_kernel,@function'); e.label('nop_kernel'); e('s_endpgm')
    hdr = [f'; @launch kernel={n} grid=({g},1,1) block=({b},1,1) lds={l}' for n, (g, b, l), _ in ks]
    if getattr(cfg, 'empty', 0):
        hdr += ['; @launch kernel=nop_kernel grid=(256,1,1) block=(256,1,1) lds=0'] * cfg.empty
        ks.append(('nop_kernel', None, 8))
    if getattr(cfg, 'twice', None) is not None: hdr.insert(cfg.twice, hdr[cfg.twice])
    out = '\n'.join(hdr) + '\n.amdgcn_target "amdgcn-amd-amdhsa--gfx950"\n.text\n' + e.text() + '.section .rodata,"a"\n'
    out += '\n'.join(kernel_desc(n, v) for n, _, v in ks) + '\n'
    open(path, 'w').write(out)

if __name__ == '__main__':
    kw = {}
    for a in sys.argv[2:]:
        k, v = a.split('=', 1); kw[k] = eval(v)
    generate(sys.argv[1], Cfg(**kw))
```

```python
import sys, struct
from emit import Emit, kernel_desc

NAME = 'standalone__autoregressive_conv_wavenet__speech_kernel'
XB, WB, WOB, OB, WSB = 2048000, 31 * 512 * 1024 * 2, 512 * 512 * 2, 2048000, 256 << 20
XF_OFF, Y_OFF, Z_OFF = 0, 4 << 20, 24 << 20
FA_OFF, FB_OFF, FC_OFF, EP_OFF = 28 << 20, (28 << 20) + 0x10000, (28 << 20) + 0x20000, (28 << 20) + 0x30000
STAMP_OFF = 128 << 20
BIG = 0x7ff00000
SX, SW, SWS, SWO, SOUT = 's[16:19]', 's[20:23]', 's[24:27]', 's[28:31]', 's[32:35]'
TAG = 36
SPIN = 1 << 14
def f32(x): return '0x%08x' % struct.unpack('<I', struct.pack('<f', x))[0]

class Cfg:
    stamps = False
    splits = (11, 11, 10)
    order = None
    npre, wpos = 4, 'mid'
    x_aux = 'nt'
    fakew = 0
    helper = None
    def __init__(self, **kw): self.__dict__.update(kw)

def rot(k): return lambda g, S: [(k * g + i) % S for i in range(S)]
def win(g, S): return [(g + i) % 5 for i in range(5)] + [5 + (g + i) % 5 for i in range(5)] + list(range(10, S))
def wave3(first=3, start=1):
    def f(g, S):
        sched = {}
        for x in range(first, S): sched[x] = ((x - first) % 5, start + x - first)
        o = [g % first]; done = {o[0]}
        for p in range(1, S):
            mine = [x for x, (lg, lp) in sched.items() if lg == g and lp <= p and x not in done]
            x = mine[0] if mine else min(y for y in range(S) if y not in done)
            o.append(x); done.add(x)
        return o
    return f

def srd(e, d, base, nbytes):
    e(f's_mov_b32 s{d}, s{base}\ns_mov_b32 s{d+1}, s{base+1}\ns_mov_b32 s{d+2}, {nbytes}\ns_mov_b32 s{d+3}, 0x00020000')

def twiddles(e, dst, mul, base, c0, t, fill=lambda: None):
    e(f'v_mul_f32 v{t+24}, {f32(16.0)}, v{mul}\nv_cos_f32 v{t+24}, v{t+24}')
    for b in range(2):
        for j in range(8): e(f'v_fmamk_f32 v{t+8*b+j}, v{mul}, {f32(c0[j] + 16 * b)}, v{base}')
        for j in range(8): e(f'v_cos_f32 v{t+8*b+j}, v{t+8*b+j}')
    e(f'v_add_f32 v{t+24}, v{t+24}, v{t+24}')
    for b in range(10):
        r = t + 8 * (b % 3)
        if b >= 2:
            for j in range(8): e(f'v_fma_f32 v{r+j}, v{t+24}, v{t+8*((b-1)%3)+j}, -v{t+8*((b-2)%3)+j}')
        for j in range(0, 8, 2): e(f'v_cvt_pk_bf16_f32 v{dst+4*b+j//2}, v{r+j}, v{r+j+1}')

def generate(path, cfg):
    e = Emit()
    def stamp(k):
        if cfg.stamps: e(f's_memrealtime s[{72+2*k}:{73+2*k}]\ns_waitcnt lgkmcnt(0)')
    def publish(lanes, voff, soff):
        e(f'v_mov_b32 v222, s{TAG}\nv_mov_b32 v223, s{TAG+1}\ns_mov_b32 exec_lo, {(1 << lanes) - 1}\ns_mov_b32 exec_hi, 0')
        e(f'buffer_store_dwordx2 v[222:223], v{voff}, {SWS}, s{soff} offen sc1\ns_mov_b64 exec, -1')
    def poll(lbl, lanes, wide, tmp, soff):
        e(f'v_lshlrev_b32 v{tmp+4}, {4 if wide else 3}, v0\ns_mov_b32 s38, 0')
        if lanes < 64: e(f's_mov_b32 exec_lo, {(1 << lanes) - 1}\ns_mov_b32 exec_hi, 0')
        e.label(lbl)
        e(f'buffer_load_dwordx{4 if wide else 2} v[{tmp}:{tmp+(3 if wide else 1)}], v{tmp+4}, {SWS}, s{soff} offen sc1')
        e(f's_add_u32 s38, s38, 1\ns_waitcnt vmcnt(0)\nv_cmp_ne_u64 vcc, s[{TAG}:{TAG+1}], v[{tmp}:{tmp+1}]')
        if wide: e(f'v_cmp_ne_u64 s[70:71], s[{TAG}:{TAG+1}], v[{tmp+2}:{tmp+3}]\ns_nop 1\ns_or_b64 vcc, vcc, s[70:71]')
        e(f's_cmp_ge_u32 s38, {SPIN}\ns_cbranch_scc1 {lbl}_out\ns_cbranch_vccnz {lbl}')
        e.label(lbl + '_out')
        e('s_mov_b64 exec, -1')

    XBASE, XLDS = 3 * 32768, 147456
    n0, n1, n2 = cfg.splits
    VX, VW, F, DD, B, TMP = 4, 12, 24, 32, 96, 224
    ACC, W, A = 0, 128, 160
    e.raw(f'.globl {NAME}\n.p2align 8\n.type {NAME},@function'); e.label(NAME)
    e('s_cmp_ge_u32 s2, 256\ns_cbranch_scc1 L_end')
    if cfg.stamps: e('s_memrealtime s[72:73]')
    e('s_load_dwordx4 s[4:7], s[0:1], 0\ns_load_dwordx4 s[8:11], s[0:1], 16\ns_load_dwordx2 s[12:13], s[0:1], 40')
    e('v_lshrrev_b32 v1, 6, v0\nv_and_b32 v0, 63, v0\nv_readfirstlane_b32 s3, v1')
    e('s_and_b32 s14, s2, 7\ns_lshr_b32 s15, s2, 3')
    e('s_lshr_b32 s39, s15, 1\ns_and_b32 s40, s15, 1\ns_lshl_b32 s41, s14, 1\ns_add_u32 s40, s40, s41')
    e('s_lshr_b32 s41, s39, 3\ns_bfe_u32 s42, s39, 0x10002\ns_and_b32 s43, s39, 3')
    e('s_lshl_b32 s43, s43, 7\ns_sub_u32 s43, s43, 32')
    e('s_mul_i32 s41, s41, 1000\ns_add_u32 s41, s41, s42\ns_lshl_b32 s41, s41, 10\ns_lshl_b32 s42, s40, 6\ns_add_u32 s41, s41, s42')
    e('v_lshrrev_b32 v2, 2, v0\ns_lshl_b32 s42, s3, 4\ns_add_u32 s42, s42, s43\nv_add_u32 v2, s42, v2')
    e('v_and_b32 v3, 3, v0\nv_lshlrev_b32 v3, 4, v3\nv_add_u32 v3, s41, v3')
    e(f'v_mov_b32 v7, {BIG}\ns_movk_i32 s41, 500\ns_cmp_lt_u32 s3, 2\ns_cselect_b32 s42, s41, 0')
    for m in range(3):
        if m: e('v_add_u32 v2, 64, v2')
        e(f'v_lshl_add_u32 v{4+m}, v2, 11, v3\nv_cmp_gt_u32 vcc, s{42 if m == 2 else 41}, v2\nv_cndmask_b32 v{4+m}, v7, v{4+m}, vcc')
    e(f's_lshl_b32 s41, s3, 10\ns_add_u32 s41, s41, {XLDS}')
    e('s_waitcnt lgkmcnt(0)')
    srd(e, 16, 4, XB)
    for m in range(3):
        e(f's_add_u32 m0, s41, {m*4096}')
        if m == 0: e(f's_add_u32 s44, s12, {EP_OFF}')
        if m == 1: e('s_nop 0')
        if m == 2: e('s_nop 0')
        e(f'buffer_load_dwordx4 v{4+m}, {SX}, 0 offen {cfg.x_aux} lds')
        if m == 0: e(f's_addc_u32 s45, s13, 0\ns_load_dwordx2 s[46:47], s[44:45], 0')
    srd(e, 20, 6, WB); srd(e, 24, 12, WSB); srd(e, 28, 8, WOB); srd(e, 32, 10, OB)
    e('s_mul_i32 s41, s15, 52\ns_lshr_b32 s41, s41, 8\ns_mul_i32 s48, s41, 5\ns_sub_u32 s48, s15, s48')
    e('s_cmp_ge_u32 s15, 30\ns_cselect_b32 s59, 1, 0\ns_min_u32 s41, s41, 5')
    e('s_mul_i32 s42, s14, 6\ns_add_u32 s42, s42, s41\ns_lshr_b32 s49, s42, 4\ns_and_b32 s52, s42, 15')
    e(f's_mov_b32 s43, 0\ns_mov_b32 s58, {n0}')
    e(f's_cmp_eq_u32 s49, 1\ns_cselect_b32 s43, {n0}, s43\ns_cselect_b32 s58, {n1}, s58')
    e(f's_cmp_eq_u32 s49, 2\ns_cselect_b32 s43, {n0+n1}, s43\ns_cselect_b32 s58, {n2}, s58')
    def table(g, S):
        o = cfg.order(g, S) if cfg.order else list(range(S))
        assert sorted(o) == list(range(S)), o
        return sum(x << (4 * i) for i, x in enumerate(o))
    e('s_lshl_b32 s41, s58, 3\ns_add_u32 s41, s41, s48\ns_mov_b64 s[60:61], 0')
    for g in range(5):
        for S in sorted(set(cfg.splits)):
            v = table(g, S)
            e(f's_cmp_eq_u32 s41, {S*8+g}\ns_cselect_b32 s60, {v & 0xffffffff}, s60\ns_cselect_b32 s61, {v >> 32}, s61')
    e('s_lshl_b32 s54, s43, 15\ns_lshl_b32 s41, s52, 7\ns_add_u32 s54, s54, s41')
    e(f's_mul_i32 s55, s43, 122880\ns_mul_i32 s41, s48, 24576\ns_add_u32 s55, s55, s41')
    e(f's_lshr_b32 s63, s43, 1\ns_min_u32 s63, s63, 8\ns_lshl_b32 s63, s63, 7\ns_lshl_b32 s41, s14, 11\ns_add_u32 s63, s63, s41\ns_add_u32 s63, s63, {FA_OFF}')
    e('v_bfe_u32 v21, v0, 3, 1\nv_lshrrev_b32 v22, 4, v0\nv_lshl_add_u32 v21, v21, 2, v22\nv_lshlrev_b32 v21, 11, v21')
    e('s_lshl_b32 s41, s3, 23\nv_add_u32 v21, s41, v21\nv_and_b32 v22, 7, v0')
    for t in range(4):
        e(f'v_xor_b32 v23, {2*t}, v22\nv_lshl_add_u32 v23, v23, 4, v21')
        e(f'v_add_u32 v{VW+t}, {(t << 20) - t * 1024}, v23\nv_add_u32 v{VW+4+t}, {((t + 4) << 20) - t * 1024}, v23')
    e('s_lshl_b32 s56, s3, 13\ns_add_u32 s57, s56, 98304')
    for i, S in enumerate(sorted(set(cfg.splits))):
        r = (2 - (2 * S - 1)) % 3
        if i == 0: e(f's_mov_b32 s50, {r*32768}\ns_mov_b32 s64, {(r+1)%3*32768}\ns_mov_b32 s51, {(r+2)%3*32768}')
        else: e(f's_cmp_eq_u32 s58, {S}\ns_cselect_b32 s50, {r*32768}, s50\ns_cselect_b32 s64, {(r+1)%3*32768}, s64\ns_cselect_b32 s51, {(r+2)%3*32768}, s51')
    e('s_add_u32 s50, s50, s56\ns_add_u32 s64, s64, s56\ns_add_u32 s51, s51, s56')
    e('s_and_b32 s62, s60, 15\ns_lshr_b64 s[60:61], s[60:61], 4\ns_lshl_b32 s65, s62, 15\ns_add_u32 s65, s65, s54')
    wload = lambda t: f'buffer_load_dwordx4 v{VW+t}, {SW}, s65 offen offset:{(t&3)*1024} lds'
    xload = lambda t, v=3: f'buffer_load_dwordx4 v{v}, {SWS}, s45 offen offset:{t*1024} sc1 lds'
    def first(slot, ts):
        for t in ts:
            if t % 4 == 0: e(f's_add_u32 m0, s{slot}, {t*1024}')
            e(wload(t))
    pre = range(cfg.npre)
    if cfg.wpos == 'early': first(50, pre)
    F0, F1, AB, D0, D1, T0 = 32, 72, 112, 152, 168, 184
    def fwd(dst, sg):
        e(f'v_and_b32 v8, 15, v0\nv_add_u32 v8, {sg}, v8\nv_lshl_add_u32 v8, v8, 1, 1\nv_cvt_f32_u32 v8, v8\nv_mul_f32 v8, {f32(1/320)}, v8')
        e('v_bfe_u32 v9, v0, 4, 1\nv_cvt_f32_u32 v9, v9\nv_mul_f32 v9, 0x3e800000, v9')
        e('v_lshrrev_b32 v10, 5, v0\nv_lshlrev_b32 v10, 3, v10\nv_cvt_f32_u32 v10, v10\nv_fma_f32 v9, v8, v10, v9')
        twiddles(e, dst, 8, 9, list(range(8)), T0)
    e('s_lshl_b32 s41, s3, 4')
    fwd(F0, 's41')
    e('s_cmp_lg_u32 s3, 0\ns_cbranch_scc1 L_a1')
    fwd(F1, '64')
    e.label('L_a1')
    e('v_lshrrev_b32 v10, 5, v0\nv_bfe_u32 v11, v0, 2, 2\nv_lshl_add_u32 v10, v10, 3, v11\nv_lshlrev_b32 v10, 6, v10')
    e(f'v_bfe_u32 v11, v0, 4, 1\nv_lshl_add_u32 v10, v11, 5, v10\nv_and_b32 v11, 3, v0\nv_lshl_add_u32 v10, v11, 3, v10\nv_add_u32 v10, {XLDS}, v10')
    e('v_bfe_u32 v8, v0, 3, 1\nv_mul_u32_u24 v8, 12288, v8\nv_lshrrev_b32 v11, 5, v0\nv_lshl_add_u32 v8, v11, 11, v8')
    e('s_lshr_b32 s41, s39, 1\nv_and_b32 v11, 7, v0\nv_xor_b32 v11, s41, v11\nv_lshl_add_u32 v9, v11, 4, v8')
    e('v_bfe_u32 v11, v0, 4, 1\nv_cmp_eq_u32 vcc, 1, v11\nv_add_u32 v11, 1, v11\nv_lshl_add_u32 v8, v11, 12, v9\nv_cndmask_b32 v9, v7, v9, vcc')
    e(f's_mul_i32 s41, s40, {2*122880}\ns_mul_i32 s42, s3, 24576\ns_add_u32 s41, s41, s42\ns_lshl_b32 s42, s39, 7\ns_add_u32 s41, s41, s42')
    e('s_add_u32 s42, s41, 122880\ns_mov_b32 s43, 0x80008000')
    stamp(1)
    e(f's_waitcnt vmcnt({cfg.npre if cfg.wpos == "early" else 0}) lgkmcnt(0)\ns_barrier')
    def rd(kk):
        for h in range(2): e(f'ds_read_b64_tr_b16 v[{AB+4*kk+2*h}:{AB+4*kk+2*h+1}], v10 offset:{kk*1024+h*256}')
    for kk in range(6): rd(kk)
    if cfg.wpos == 'mid': first(50, pre)
    e(f's_mul_i32 s{TAG}, s46, 0x9E3779B1\ns_add_u32 s{TAG}, s{TAG}, 0x7F4A7C15\ns_mul_i32 s{TAG+1}, s47, 0x85EBCA6B\ns_add_u32 s{TAG+1}, s{TAG+1}, s{TAG}')
    def dft(d, f, reads):
        for kk in range(10):
            e(f'v_mfma_f32_32x32x16_bf16 v[{d}:{d+15}], v[{AB+4*kk}:{AB+4*kk+3}], v[{f+4*kk}:{f+4*kk+3}], ' + ('0' if kk == 0 else f'v[{d}:{d+15}]'))
            if reads and kk + 6 < 10: rd(kk + 6)
    def put(d, t):
        for i in range(8): e(f'v_cvt_pk_bf16_f32 v{t+i}, v{d+2*i}, v{d+2*i+1}')
        e(f'buffer_store_dwordx4 v[{t}:{t+3}], v8, {SWS}, s41 offen sc1\nbuffer_store_dwordx4 v[{t+4}:{t+7}], v8, {SWS}, s42 offen sc1')
        for i in range(8): e(f'v_xor_b32 v{t+8+i}, s43, v{t+i}')
        e(f'buffer_store_dwordx4 v[{t+8}:{t+11}], v9, {SWS}, s41 offen sc1\nbuffer_store_dwordx4 v[{t+12}:{t+15}], v9, {SWS}, s42 offen sc1')
    dft(D0, F0, True)
    e('s_cmp_lg_u32 s3, 0\ns_cbranch_scc1 L_a2')
    dft(D1, F1, False)
    put(D0, TMP)
    e(f's_add_u32 s41, s41, {4*24576}\ns_add_u32 s42, s42, {4*24576}')
    put(D1, TMP + 16)
    e('s_branch L_a3')
    e.label('L_a2'); e('s_nop 11')
    put(D0, TMP)
    e.label('L_a3')
    stamp(2)
    if cfg.wpos == 'late': first(50, pre)
    e('s_mul_i32 s41, s3, 3072\nv_lshlrev_b32 v20, 4, v0\nv_add_u32 v20, s41, v20\nv_mov_b32 v3, v7')
    e(f's_add_u32 s53, s41, {XBASE}')
    for i in range(4): e(f'v_mov_b32 v{F+i}, 0')
    Z = f'v[{F}:{F+3}]'
    zero = [f'a[{16*i}:{16*i+15}]' for i in range(12)] + [f'v[{DD+16*i}:{DD+16*i+15}]' for i in range(1, 12)]
    def zfill(k=1):
        for _ in range(k):
            if zero: e(f'v_mfma_f32_32x32x16_bf16 {zero.pop()}, {Z}, {Z}, 0')
    e('v_bfe_u32 v21, v0, 4, 1\nv_lshrrev_b32 v22, 5, v0\nv_sub_u32 v22, 1, v22\nv_lshlrev_b32 v22, 12, v22\nv_lshl_add_u32 v22, v21, 11, v22'); zfill()
    e(f'v_and_b32 v21, 15, v0\nv_lshl_add_u32 v22, v21, 7, v22\nv_add_u32 v22, {XBASE}, v22\nv_lshrrev_b32 v21, 1, v21'); zfill()
    for i in range(8):
        e(f'v_xor_b32 v23, {i}, v21\nv_lshl_add_u32 v{VX+i}, v23, 4, v22')
        if i % 2: zfill()
    e('v_and_b32 v21, 3, v0\nv_bfe_u32 v22, v0, 3, 2\nv_lshl_add_u32 v21, v22, 2, v21\ns_lshl_b32 s41, s48, 4\nv_add_u32 v21, s41, v21'); zfill()
    e(f'v_lshl_add_u32 v21, v21, 1, 1\nv_cvt_f32_u32 v21, v21\nv_mul_f32 v21, {f32(1/320)}, v21')
    e('v_bfe_u32 v22, v0, 2, 1\nv_cvt_f32_u32 v22, v22'); zfill()
    e('v_mul_f32 v22, 0x3e800000, v22\nv_lshrrev_b32 v23, 5, v0\nv_lshlrev_b32 v23, 3, v23\nv_cvt_f32_u32 v1, v23\nv_fma_f32 v22, v21, v1, v22'); zfill()
    for i, c in enumerate([16 * kk + j for kk in range(2) for j in range(8)]):
        e(f'v_fmamk_f32 v{DD+i}, v21, {f32(c)}, v22')
        if i % 4 == 3: zfill()
    for i in range(16):
        e(f'v_cos_f32 v{DD+i}, v{DD+i}')
        if i % 3 == 2: zfill()
    e('v_bfe_u32 v21, v0, 2, 2\nv_add_u32 v23, v23, v21\nv_lshlrev_b32 v1, 10, v23\nv_xor_b32 v21, s3, v21\nv_lshl_add_u32 v1, v21, 5, v1'); zfill()
    e('v_bfe_u32 v21, v0, 4, 1\nv_lshl_add_u32 v1, v21, 7, v1\nv_and_b32 v22, 3, v0\nv_lshl_add_u32 v1, v22, 3, v1\nv_subrev_u32 v1, s56, v1\nv_add_u32 v2, s50, v1'); zfill(24)
    for i in range(8): e(f'v_cvt_pk_bf16_f32 v{F+i}, v{DD+2*i}, v{DD+2*i+1}')
    for i in range(8): e(f'v_mov_b64 v[{DD+2*i}:{DD+2*i+1}], 0')
    e(f's_lshl_b32 s41, s40, 4\ns_add_u32 s41, s41, s39\ns_lshl_b32 s41, s41, 3\ns_add_u32 s41, s41, {FA_OFF}\nv_lshlrev_b32 v21, 11, v0')
    e(f's_waitcnt vmcnt({cfg.npre if cfg.wpos == "late" else 0})\ns_barrier')
    e('s_cmp_lg_u32 s3, 1\ns_cbranch_scc1 L_a4')
    e(f'v_mov_b32 v22, s{TAG}\nv_mov_b32 v23, s{TAG+1}\ns_mov_b64 exec, 0xff\nbuffer_store_dwordx2 v[22:23], v21, {SWS}, s41 offen sc1\ns_mov_b64 exec, -1')
    e.label('L_a4')
    stamp(3)
    e('v_lshrrev_b32 v21, 3, v0\nv_bfe_u32 v22, v21, 1, 1\nv_lshlrev_b32 v22, 2, v22\nv_and_b32 v23, 7, v0\nv_xor_b32 v22, v22, v23')
    e(f'v_lshlrev_b32 v21, 10, v21\nv_lshl_add_u32 v{TMP}, v22, 4, v21')
    for t in range(1, 4): e(f'v_add_u32 v{TMP+t}, {t*7168}, v{TMP}')
    e('s_and_b32 s66, s15, 7\ns_lshl_b32 s66, s66, 7\ns_lshl_b32 s41, s3, 16\ns_add_u32 s66, s66, s41')
    oload = lambda t: f'buffer_load_dwordx4 v{TMP+(t&3)}, {SWO}, s66 offen offset:{(t&3)*1024} lds'
    e('s_cmp_eq_u32 s59, 1\ns_cbranch_scc1 L_helper')
    first(50, range(cfg.npre, 8))
    e('s_and_b32 s41, s58, 1\ns_mul_i32 s41, s41, 24576\ns_add_u32 s41, s41, s53\ns_mov_b32 s45, 0\ns_add_u32 s65, s65, 16384')
    for h in range(2):
        e(f's_add_u32 m0, s41, {h*12288}')
        for t in range(3): e(xload(t))
    first(64, range(8))
    e('s_lshr_b32 s42, s58, 1\ns_mov_b32 s67, 1')
    e('s_bitcmp1_b32 s58, 0\ns_waitcnt vmcnt(8)\ns_cbranch_scc0 L_phase2')

    def interval(ph, rdw=True, ldw='w', ldx=True, maxT=8, maxC=8, rda=True, units=range(8)):
        post = []
        if ldx:
            if ph % 2 == 0: post += ['s_mul_i32 s45, s62, 122880\ns_and_b32 s62, s60, 15', f's_add_u32 s45, s45, s55\ns_add_u32 m0, s53, {ph*12288}']
            else: post += [f's_add_u32 s45, s45, 12288\ns_add_u32 m0, s53, {ph*12288}']
            post += [xload(0), xload(1)]
            if ldw == 'w':
                if ph % 2 == 0: post += [xload(2) + ('\ns_mov_b32 s65, 0' if cfg.fakew else '\ns_lshl_b32 s65, s62, 15'), 's_add_u32 s65, s65, s54\ns_mov_b32 m0, s51']
                else: post += [xload(2) + '\ns_lshr_b64 s[60:61], s[60:61], 4', 's_add_u32 s65, s65, 16384\ns_mov_b32 m0, s51']
                post += [wload(t) for t in range(3)] + [wload(3) + '\ns_add_u32 m0, s51, 4096'] + [wload(t) for t in range(4, 8)]
            else:
                post += [xload(2), 's_mov_b32 m0, s51'] + [oload(t) for t in range(3)] + [oload(3) + '\ns_add_u32 m0, s51, 4096\ns_add_u32 s66, s66, 32768']
                post += [oload(t) for t in range(4, 7)] + [oload(7) + f'\ns_add_u32 s66, s66, {262144 - 32768}']
        if rdw: post += ['s_mov_b32 s51, s50\ns_add_u32 s50, s50, 32768', 's_cmp_eq_u32 s50, s57\ns_cselect_b32 s50, s56, s50']
        post += [''] * (2 * len(units) - len(post))
        ntr = [3, 3, 2, 2, 2, 2, 2, 0]; k = 0
        for i in units:
            U = (8 * ph + i - 2) % 32; s, u = U >> 4, U & 15; j, kk = u >> 1, u & 1
            if i < maxT:
                d = DD + 16 * (j & 3); w = W + 4 * (U % 8)
                e(f'v_mfma_f32_32x32x16_bf16 v[{d}:{d+15}], v[{F+4*kk}:{F+4*kk+3}], a[{w}:{w+3}], ' + ('0' if kk == 0 else f'v[{d}:{d+15}]'))
            if rdw:
                for _ in range(ntr[i]):
                    f, h = k >> 1, k & 1; r = W + 4 * f + 2 * h; k += 1
                    e(f'ds_read_b64_tr_b16 a[{r}:{r+1}], v2 offset:{(f & 1)*16384 + h*4096 + (f >> 1)*256}')
            if i < maxC:
                P = ((U >> 2) - 1) % 8; sp, p = P >> 2, P & 3; d0 = DD + 16 * ((2 * p) & 3)
                for x in range(4):
                    bn = 4 * (U & 3) + x
                    e(f'v_cvt_pk_bf16_f32 v{B+64*sp+4*bn+p}, v{d0+bn}, v{d0+16+bn}')
            for v in range(2):
                a = A + 4 * ((2 * U + v) % 8); c = ACC + 8 * u + 4 * v; b_ = B + 64 * (1 - s) + 4 * u
                e(f'v_mfma_f32_16x16x32_bf16 a[{c}:{c+3}], a[{a}:{a+3}], v[{b_}:{b_+3}], a[{c}:{c+3}]')
                if rda:
                    a2 = A + 4 * ((2 * (U + 2) + v) % 8)
                    e(f'ds_read_b128 a[{a2}:{a2+3}], v{VX+i} offset:{((ph + 2) % 4)*12288 + v*4096}')
                e(post.pop(0))
        assert not any(post)
        if rdw: e('v_add_u32 v2, s50, v1')
    def loop():
        for ph in range(4):
            if ph == 2: e.label('L_phase2', keep=True)
            e('s_barrier')
            interval(ph)
            if ph % 2:
                e(f's_cmp_lg_u32 s67, 0\ns_cbranch_scc1 L_hook{ph}'); e.label(f'L_back{ph}', keep=True)
            if ph == 3: e('s_sub_u32 s42, s42, 1\ns_cmp_lg_u32 s42, 0')
            e('s_waitcnt vmcnt(11) lgkmcnt(4)')
        e('s_cbranch_scc1 L_phase0')
    n = len(e.lines); loop(); del e.lines[n:]
    e.raw('.p2align 3'); e.label('L_phase0', keep=True)
    loop()
    e('s_barrier'); interval(0, ldw='o'); e('s_waitcnt vmcnt(11) lgkmcnt(4)')
    e('s_barrier'); interval(1, ldw='o'); e('s_waitcnt vmcnt(8)')
    e('s_barrier'); interval(2, rdw=False, ldx=False, maxT=2, maxC=6)
    interval(3, rdw=False, ldx=False, maxT=0, maxC=0)
    interval(0, rdw=False, ldx=False, maxT=0, maxC=0, rda=False, units=range(2))
    stamp(5)
    e(f'v_lshrrev_b32 v21, 4, v0\nv_mul_u32_u24 v20, {4*983040}, v21\nv_and_b32 v21, 15, v0\nv_lshl_add_u32 v20, v21, 4, v20')
    e('s_lshl_b32 s40, s52, 1\ns_lshr_b32 s41, s3, 1\ns_add_u32 s40, s40, s41\ns_mul_i32 s40, s40, 3\ns_add_u32 s40, s40, s49\ns_mul_i32 s40, s40, 5')
    e(f's_add_u32 s40, s40, s48\ns_lshl_b32 s40, s40, 11\ns_and_b32 s41, s3, 1\ns_lshl_b32 s41, s41, 8\ns_add_u32 s40, s40, s41\ns_add_u32 s40, s40, {Y_OFF}')
    k = 0
    for hb in range(2):
        for r in range(4):
            e(f's_add_u32 s41, s40, {r*983040}')
            for pl in range(2):
                t = DD + 8 * (k % 2); o = B + 4 * k; k += 1
                for x in range(8): e(f'v_accvgpr_read_b32 v{t+x}, a{ACC+8*(8*hb+x)+4*pl+r}')
                for x in range(4): e(f'v_cvt_pk_bf16_f32 v{o+x}, v{t+2*x}, v{t+2*x+1}')
                e(f'buffer_store_dwordx4 v[{o}:{o+3}], v20, {SWS}, s41 offen offset:{hb*1024+pl*512} sc1')
    e('s_branch L_phasec')
    for ph in (1, 3):
        e.label(f'L_hook{ph}')
        e(f's_cmp_lg_u32 s3, 0\ns_cbranch_scc1 L_hook{ph}_go')
        poll(f'L_polla{ph}', 64, True, TMP + 4, 63)
        e.label(f'L_hook{ph}_go')
        e(f's_barrier\nv_mov_b32 v3, v20\ns_mov_b32 s67, 0\ns_sub_u32 s45, s45, 12288\ns_add_u32 m0, s53, {(ph-1)*12288}')
        stamp(4)
        for t in range(3): e(xload(t))
        e(f's_add_u32 s45, s45, 12288\ns_add_u32 m0, s53, {ph*12288}')
        for t in range(3): e(xload(t))
        e(f's_waitcnt vmcnt(3)\ns_branch L_back{ph}')
    e.label('L_helper')
    if cfg.stamps: e('s_memrealtime s[80:81]\ns_memrealtime s[82:83]\ns_waitcnt lgkmcnt(0)')
    if cfg.helper: cfg.helper(e, cfg)
    e('s_waitcnt vmcnt(0)\ns_barrier')
    for h in range(2):
        for t in range(8):
            if t % 4 == 0: e(f's_add_u32 m0, s56, {h*32768 + t*1024}')
            e(oload(t))
            if t % 4 == 3: e(f's_add_u32 s66, s66, {32768 if t == 3 else 262144 - 32768}')
    e.label('L_phasec')
    G, YA, CA, WO = 32, 72, 120, 0
    e('s_lshl_b32 s39, s14, 1\ns_lshr_b32 s40, s15, 4\ns_add_u32 s39, s39, s40\ns_and_b32 s40, s15, 15')
    e(f'v_and_b32 v8, 31, v0\ns_lshl_b32 s41, s3, 5\ns_add_u32 s41, s41, 32\nv_add_u32 v8, s41, v8\nv_cvt_f32_u32 v8, v8\nv_mul_f32 v8, {f32(1/320)}, v8')
    e('v_lshrrev_b32 v9, 5, v0\nv_cvt_f32_u32 v9, v9\nv_mul_f32 v9, 0x3e800000, v9')
    twiddles(e, G, 8, 9, [2 * j + 1 for j in range(8)], 184)
    e('v_lshrrev_b32 v21, 1, v0\nv_lshlrev_b32 v21, 12, v21\nv_and_b32 v22, 1, v0\nv_lshl_add_u32 v21, v22, 8, v21')
    e('s_lshr_b32 s41, s52, 3\ns_mul_i32 s41, s41, 15\ns_mul_i32 s42, s49, 5\ns_add_u32 s41, s41, s42\ns_add_u32 s41, s41, s48\ns_lshl_b32 s41, s41, 3')
    e(f's_and_b32 s42, s52, 7\ns_lshl_b32 s42, s42, 9\ns_add_u32 s41, s41, s42\ns_add_u32 s41, s41, {FB_OFF}')
    e(f's_lshl_b32 s43, s39, 4\ns_add_u32 s43, s43, s40\ns_lshl_b32 s42, s43, 8\ns_add_u32 s42, s42, {FB_OFF}')
    e('s_and_b32 s44, s3, 1\ns_lshr_b32 s45, s3, 1')
    e('s_lshl_b32 s46, s39, 5\ns_add_u32 s46, s46, s40\ns_lshl_b32 s47, s44, 4\ns_add_u32 s46, s46, s47')
    e(f's_mul_i32 s46, s46, 30\ns_add_u32 s46, s46, s45\ns_lshl_b32 s46, s46, 10\ns_add_u32 s46, s46, {Y_OFF}')
    e('v_lshlrev_b32 v2, 4, v0\nv_add_u32 v3, 0x10000, v2\ns_lshl_b32 s47, s3, 10\ns_add_u32 s47, s47, 0x10000')
    e('v_lshrrev_b32 v7, 5, v0\nv_bfe_u32 v8, v0, 2, 2\nv_lshl_add_u32 v7, v7, 2, v8\nv_lshlrev_b32 v4, 7, v7')
    e('v_bfe_u32 v7, v0, 4, 1\nv_and_b32 v8, 1, v0\nv_lshl_add_u32 v7, v7, 1, v8\nv_bfe_u32 v8, v0, 3, 1\nv_xor_b32 v8, s44, v8\nv_lshl_add_u32 v7, v8, 2, v7')
    e('v_lshl_add_u32 v4, v7, 4, v4\nv_bfe_u32 v7, v0, 1, 1\nv_lshl_add_u32 v4, v7, 3, v4')
    e('s_waitcnt vmcnt(0)\ns_barrier')
    stamp(6)
    e('s_cmp_lg_u32 s3, 0\ns_cbranch_scc1 L_c1')
    e('s_cmp_eq_u32 s59, 1\ns_cbranch_scc1 L_c0')
    publish(32, 21, 41)
    e.label('L_c0')
    poll('L_pollb', 30, False, TMP + 4, 42)
    e.label('L_c1')
    e('s_barrier')
    stamp(7)
    for i in range(15):
        e(f's_add_u32 m0, s47, {i*4096}\ns_add_u32 s41, s46, {i*2048}\nbuffer_load_dwordx4 v2, {SWS}, s41 offen sc1 lds')
    for ks in range(32):
        for h in range(2): e(f'ds_read_b64_tr_b16 a[{WO+4*ks+2*h}:{WO+4*ks+2*h+1}], v4 offset:{ks*2048+h*1024}')
    e(f's_lshl_b32 s50, s39, 2\ns_add_u32 s50, s50, s3\ns_lshl_b32 s50, s50, 5\ns_lshl_b32 s41, s40, 1\ns_add_u32 s50, s50, s41\ns_lshl_b32 s50, s50, 10\ns_add_u32 s50, s50, {Z_OFF}')
    e('s_waitcnt lgkmcnt(0)')
    for ch in range(5):
        e(f's_waitcnt vmcnt({12-3*ch})\ns_barrier')
        for x in range(12): e(f'ds_read_b128 v[{YA+4*x}:{YA+4*x+3}], v3 offset:{(12*ch+x)*1024}')
        for x in range(12):
            ph = 12 * ch + x; m, side = ph >> 1, ph & 1; kb = m % 10; c = CA + 16 * side
            e(f'v_mfma_f32_32x32x16_bf16 v[{c}:{c+15}], v[{YA+4*x}:{YA+4*x+3}], v[{G+4*kb}:{G+4*kb+3}], ' + ('0' if m == 0 else f'v[{c}:{c+15}]'))
    stamp(8)
    L2E = 1.4426950408889634
    f_, g_, t_ = CA, CA + 16, YA
    for i in range(16): e(f'v_mul_f32 v{t_+i}, {f32(2*L2E/80)}, v{f_+i}\nv_mul_f32 v{g_+i}, {f32(-L2E/80)}, v{g_+i}')
    for i in range(16): e(f'v_exp_f32 v{t_+i}, v{t_+i}\nv_exp_f32 v{g_+i}, v{g_+i}')
    for i in range(16): e(f'v_add_f32 v{t_+i}, 1.0, v{t_+i}\nv_add_f32 v{g_+i}, 1.0, v{g_+i}')
    for i in range(16): e(f'v_rcp_f32 v{t_+i}, v{t_+i}\nv_rcp_f32 v{g_+i}, v{g_+i}')
    for i in range(16): e(f'v_fma_f32 v{t_+i}, v{t_+i}, -2.0, 1.0')
    for i in range(16): e(f'v_mul_f32 v{f_+i}, v{t_+i}, v{g_+i}')
    for i in range(8): e(f'v_cvt_pk_bf16_f32 v{12+i}, v{f_+2*i}, v{f_+2*i+1}')
    e(f'buffer_store_dwordx4 v[12:15], v2, {SWS}, s50 offen sc1\nbuffer_store_dwordx4 v[16:19], v2, {SWS}, s50 offen offset:1024 sc1')
    e(f'v_lshlrev_b32 v21, 7, v0\ns_lshl_b32 s41, s39, 11\ns_lshl_b32 s42, s40, 3\ns_add_u32 s41, s41, s42\ns_add_u32 s41, s41, {FC_OFF}')
    e(f's_lshl_b32 s42, s43, 7\ns_add_u32 s42, s42, {FC_OFF}')
    e('s_lshl_b32 s46, s39, 1\ns_lshr_b32 s47, s40, 3\ns_add_u32 s46, s46, s47\ns_and_b32 s47, s40, 7')
    e(f's_lshl_b32 s50, s46, 16\ns_lshl_b32 s51, s45, 15\ns_lshl_b32 s53, s44, 12\ns_add_u32 s51, s51, s53\ns_add_u32 s50, s50, s51\ns_add_u32 s50, s50, {Z_OFF}')
    e('s_add_u32 s51, s51, 0x10000\ns_lshl_b32 s53, s45, 15\nv_add_u32 v5, s53, v3')
    e('s_lshr_b32 s54, s46, 4\ns_bfe_u32 s55, s46, 0x10003\ns_and_b32 s56, s46, 7\ns_lshl_b32 s56, s56, 6\ns_lshl_b32 s57, s45, 5\ns_add_u32 s56, s56, s57')
    e('s_mul_i32 s54, s54, 1000\ns_add_u32 s54, s54, s55\ns_lshl_b32 s54, s54, 10\ns_lshl_b32 s55, s47, 7\ns_add_u32 s54, s54, s55\ns_lshl_b32 s55, s44, 6\ns_add_u32 s54, s54, s55')
    e('v_and_b32 v7, 31, v0\nv_add_u32 v7, s56, v7\nv_lshrrev_b32 v8, 5, v0\nv_lshlrev_b32 v8, 4, v8\nv_add_u32 v8, s54, v8\nv_lshl_add_u32 v6, v7, 11, v8')
    e(f'v_mov_b32 v9, {BIG}\ns_movk_i32 s55, 500\nv_cmp_gt_u32 vcc, s55, v7\nv_cndmask_b32 v6, v9, v6, vcc')
    e('s_waitcnt vmcnt(0)\ns_barrier')
    stamp(9)
    e('s_cmp_lg_u32 s3, 0\ns_cbranch_scc1 L_d1')
    publish(16, 21, 41)
    poll('L_pollc', 16, False, TMP + 4, 42)
    e.label('L_d1')
    e('s_barrier')
    stamp(10)
    for ch in range(4):
        e(f's_add_u32 m0, s51, {8*ch*1024}\ns_add_u32 s41, s50, {8*ch*1024}')
        for x in range(4): e(f'buffer_load_dwordx4 v2, {SWS}, s41 offen offset:{x*1024} sc1 lds')
    ZB, OA = 32, 96
    for ch in range(4):
        e(f's_waitcnt vmcnt({12-4*ch})\ns_barrier')
        zb = ZB + 32 * (ch & 1)
        for x in range(8): e(f'ds_read_b128 v[{zb+4*x}:{zb+4*x+3}], v5 offset:{(8*ch+x)*1024}')
        for x in range(8):
            ks = 8 * ch + x
            e(f'v_mfma_f32_32x32x16_bf16 v[{OA}:{OA+15}], a[{WO+4*ks}:{WO+4*ks+3}], v[{zb+4*x}:{zb+4*x+3}], ' + ('0' if ks == 0 else f'v[{OA}:{OA+15}]'))
    for i in range(8): e(f'v_cvt_pk_bf16_f32 v{12+i}, v{OA+2*i}, v{OA+2*i+1}')
    e(f'buffer_store_dwordx4 v[12:15], v6, {SOUT}, 0 offen\nbuffer_store_dwordx4 v[16:19], v6, {SOUT}, 0 offen offset:32')
    e('s_or_b32 s41, s2, s3\ns_cmp_lg_u32 s41, 0\ns_cbranch_scc1 L_fin')
    e(f'v_mov_b32 v21, 0\ns_mov_b32 s41, {EP_OFF}')
    publish(1, 21, 41)
    e.label('L_fin')
    if cfg.stamps:
        e('s_waitcnt vmcnt(0)\ns_memrealtime s[94:95]\ns_waitcnt lgkmcnt(0)')
        for i in range(12): e(f'v_mov_b32 v{8+i}, s{72+2*i}')
        e(f's_lshl_b32 s41, s2, 2\ns_add_u32 s41, s41, s3\ns_lshl_b32 s41, s41, 6\ns_add_u32 s41, s41, {STAMP_OFF}\nv_mov_b32 v6, 0')
        for i in range(3): e(f'buffer_store_dwordx4 v[{8+4*i}:{11+4*i}], v6, {SWS}, s41 offen offset:{16*i}')
    e.label('L_end'); e('s_endpgm')
    out = '; @launch grid=(256,1,1) block=(256,1,1) lds=159744\n.amdgcn_target "amdgcn-amd-amdhsa--gfx950"\n.text\n' + e.text()
    out += '.section .rodata,"a"\n' + kernel_desc(NAME, 448, accum=256) + '\n'
    open(path, 'w').write(out)

if __name__ == '__main__':
    kw = {}
    for a in sys.argv[2:]:
        k, v = a.split('=', 1); kw[k] = eval(v)
    generate(sys.argv[1], Cfg(**kw))
```

```python
import sys, struct
from emit import Emit, kernel_desc

NAME = 'standalone__autoregressive_conv_wavenet__speech_kernel'
XB, WB, WOB, OB, WSB = 2048000, 31 * 512 * 1024 * 2, 512 * 512 * 2, 2048000, 256 << 20
XF_OFF, Y_OFF, Z_OFF = 0, 4 << 20, 24 << 20
FA_OFF, FB_OFF, FC_OFF, EP_OFF = 28 << 20, (28 << 20) + 0x10000, (28 << 20) + 0x20000, (28 << 20) + 0x30000
STAMP_OFF = 128 << 20
BIG = 0x7ff00000
SX, SW, SWS, SWO, SOUT = 's[16:19]', 's[20:23]', 's[24:27]', 's[28:31]', 's[32:35]'
TAG = 36
SPIN = 1 << 14
def f32(x): return '0x%08x' % struct.unpack('<I', struct.pack('<f', x))[0]

class Cfg:
    stamps = False
    splits = (11, 11, 10)
    order = None
    batches = ('early', 'pre', 'post', 'post')
    leaders = (4, 0, 1, 2, 3)
    wo_pf = 1
    hsync = 'none'
    slownat = 0
    hstart = 3
    slowpre = 0
    lead = 1
    x_aux = 'nt'
    fakew = 0
    trace = 0
    helper = None
    def __init__(self, **kw): self.__dict__.update(kw)

def step_order(cfg, g, slow, S):
    o = [g & 1]
    sched = {} if slow else {x: (cfg.leaders[(x - 2) % 5], cfg.lead + x - 2) for x in range(2, S)}
    for p in range(1, S):
        mine = [x for x, (lg, lp) in sched.items() if lg == g and lp <= p and x not in o]
        o.append(mine[0] if mine else min(y for y in range(S) if y not in o))
    return o

def srd(e, d, base, nbytes):
    e(f's_mov_b32 s{d}, s{base}\ns_mov_b32 s{d+1}, s{base+1}\ns_mov_b32 s{d+2}, {nbytes}\ns_mov_b32 s{d+3}, 0x00020000')

def twiddles(e, dst, mul, base, c0, t, fill=lambda: None):
    e(f'v_mul_f32 v{t+24}, {f32(16.0)}, v{mul}\nv_cos_f32 v{t+24}, v{t+24}')
    for b in range(2):
        for j in range(8): e(f'v_fmamk_f32 v{t+8*b+j}, v{mul}, {f32(c0[j] + 16 * b)}, v{base}')
        for j in range(8): e(f'v_cos_f32 v{t+8*b+j}, v{t+8*b+j}')
    e(f'v_add_f32 v{t+24}, v{t+24}, v{t+24}')
    for b in range(10):
        r = t + 8 * (b % 3)
        if b >= 2:
            for j in range(8): e(f'v_fma_f32 v{r+j}, v{t+24}, v{t+8*((b-1)%3)+j}, -v{t+8*((b-2)%3)+j}')
        for j in range(0, 8, 2): e(f'v_cvt_pk_bf16_f32 v{dst+4*b+j//2}, v{r+j}, v{r+j+1}')

def generate(path, cfg):
    e = Emit()
    def stamp(k):
        if cfg.stamps: e(f's_memrealtime s[{72+2*k}:{73+2*k}]\ns_waitcnt lgkmcnt(0)')
    def publish(lanes, voff, soff):
        e(f'v_mov_b32 v222, s{TAG}\nv_mov_b32 v223, s{TAG+1}\ns_mov_b32 exec_lo, {(1 << lanes) - 1}\ns_mov_b32 exec_hi, 0')
        e(f'buffer_store_dwordx2 v[222:223], v{voff}, {SWS}, s{soff} offen sc1\ns_mov_b64 exec, -1')
    def poll(lbl, lanes, wide, tmp, soff):
        e(f'v_lshlrev_b32 v{tmp+4}, {4 if wide else 3}, v0\ns_mov_b32 s38, 0')
        if lanes < 64: e(f's_mov_b32 exec_lo, {(1 << lanes) - 1}\ns_mov_b32 exec_hi, 0')
        e.label(lbl)
        e(f'buffer_load_dwordx{4 if wide else 2} v[{tmp}:{tmp+(3 if wide else 1)}], v{tmp+4}, {SWS}, s{soff} offen sc1')
        e(f's_add_u32 s38, s38, 1\ns_waitcnt vmcnt(0)\nv_cmp_ne_u64 vcc, s[{TAG}:{TAG+1}], v[{tmp}:{tmp+1}]')
        if wide: e(f'v_cmp_ne_u64 s[70:71], s[{TAG}:{TAG+1}], v[{tmp+2}:{tmp+3}]\ns_nop 1\ns_or_b64 vcc, vcc, s[70:71]')
        e(f's_cmp_ge_u32 s38, {SPIN}\ns_cbranch_scc1 {lbl}_out\ns_cbranch_vccnz {lbl}')
        e.label(lbl + '_out')
        e('s_mov_b64 exec, -1')

    XBASE, XLDS = 3 * 32768, 147456
    n0, n1, n2 = cfg.splits
    VX, VW, F, DD, B, TMP = 4, 12, 24, 32, 96, 224
    ACC, W, A = 0, 128, 160
    e.raw(f'.globl {NAME}\n.p2align 8\n.type {NAME},@function'); e.label(NAME)
    e('s_cmp_ge_u32 s2, 256\ns_cbranch_scc1 L_end')
    if cfg.stamps: e('s_memrealtime s[72:73]')
    e('s_load_dwordx4 s[4:7], s[0:1], 0\ns_load_dwordx4 s[8:11], s[0:1], 16\ns_load_dwordx2 s[12:13], s[0:1], 40')
    e('v_lshrrev_b32 v1, 6, v0\nv_and_b32 v0, 63, v0\nv_readfirstlane_b32 s3, v1')
    e('s_and_b32 s14, s2, 7\ns_lshr_b32 s15, s2, 3')
    e('s_lshr_b32 s39, s15, 1\ns_and_b32 s40, s15, 1\ns_lshl_b32 s41, s14, 1\ns_add_u32 s40, s40, s41')
    e('s_lshr_b32 s41, s39, 3\ns_bfe_u32 s42, s39, 0x10002\ns_and_b32 s43, s39, 3')
    e('s_lshl_b32 s43, s43, 7\ns_sub_u32 s43, s43, 32')
    e('s_mul_i32 s41, s41, 1000\ns_add_u32 s41, s41, s42\ns_lshl_b32 s41, s41, 10\ns_lshl_b32 s42, s40, 6\ns_add_u32 s41, s41, s42')
    e('v_lshrrev_b32 v2, 2, v0\ns_lshl_b32 s42, s3, 4\ns_add_u32 s42, s42, s43\nv_add_u32 v2, s42, v2')
    e('v_and_b32 v3, 3, v0\nv_lshlrev_b32 v3, 4, v3\nv_add_u32 v3, s41, v3')
    e(f'v_mov_b32 v7, {BIG}\ns_movk_i32 s41, 500\ns_cmp_lt_u32 s3, 2\ns_cselect_b32 s42, s41, 0')
    for m in range(3):
        if m: e('v_add_u32 v2, 64, v2')
        e(f'v_lshl_add_u32 v{4+m}, v2, 11, v3\nv_cmp_gt_u32 vcc, s{42 if m == 2 else 41}, v2\nv_cndmask_b32 v{4+m}, v7, v{4+m}, vcc')
    e(f's_lshl_b32 s41, s3, 10\ns_add_u32 s41, s41, {XLDS}')
    e('s_waitcnt lgkmcnt(0)')
    srd(e, 16, 4, XB)
    for m in range(3):
        e(f's_add_u32 m0, s41, {m*4096}')
        if m == 0: e(f's_add_u32 s44, s12, {EP_OFF}')
        if m == 1: e('s_nop 0')
        if m == 2: e('s_nop 0')
        e(f'buffer_load_dwordx4 v{4+m}, {SX}, 0 offen {cfg.x_aux} lds')
        if m == 0: e(f's_addc_u32 s45, s13, 0\ns_load_dwordx2 s[46:47], s[44:45], 0')
    srd(e, 20, 6, WB); srd(e, 24, 12, WSB); srd(e, 28, 8, WOB); srd(e, 32, 10, OB)
    e('s_mul_i32 s41, s15, 52\ns_lshr_b32 s41, s41, 8\ns_mul_i32 s48, s41, 5\ns_sub_u32 s48, s15, s48')
    e('s_cmp_ge_u32 s15, 30\ns_cselect_b32 s59, 1, 0\ns_min_u32 s41, s41, 5')
    e('s_mul_i32 s43, s14, 6\ns_add_u32 s42, s43, s41\ns_add_u32 s41, s43, 4\ns_and_b32 s41, s41, 0x38\ns_add_u32 s41, s41, 3')
    e('s_cmp_ge_u32 s15, 30\ns_cselect_b32 s42, s41, s42\ns_lshr_b32 s49, s42, 4\ns_and_b32 s52, s42, 15')
    e(f's_mov_b32 s43, 0\ns_mov_b32 s58, {n0}')
    e(f's_cmp_eq_u32 s49, 1\ns_cselect_b32 s43, {n0}, s43\ns_cselect_b32 s58, {n1}, s58')
    e(f's_cmp_eq_u32 s49, 2\ns_cselect_b32 s43, {n0+n1}, s43\ns_cselect_b32 s58, {n2}, s58')
    pack = lambda o: sum(x << (4 * i) for i, x in enumerate(o))
    e('s_lshl_b32 s41, s58, 3\ns_add_u32 s41, s41, s48\ns_mov_b64 s[60:61], 0')
    for S in sorted(set(cfg.splits)):
        for g in range(5):
            v = pack(step_order(cfg, g, 0, S))
            e(f's_cmp_eq_u32 s41, {S*8+g}\ns_cselect_b32 s60, {v & 0xffffffff}, s60\ns_cselect_b32 s61, {v >> 32}, s61')
    v0, v1 = (pack(step_order(cfg, g, 1, max(cfg.splits))) for g in range(2))
    if cfg.slownat: e(f's_bitcmp1_b32 s48, 0\ns_mov_b32 s42, {v0 & 0xffffffff}\ns_cselect_b32 s42, {v1 & 0xffffffff}, s42')
    if cfg.slownat: e(f's_and_b32 s41, s52, 7\ns_cmp_eq_u32 s41, 3\ns_cselect_b32 s60, s42, s60\ns_cselect_b32 s61, {v0 >> 32}, s61')
    e('s_cmp_eq_u32 s59, 1\ns_cselect_b32 s60, 2, s60\ns_cselect_b32 s41, 0, 1\ns_lshr_b32 s68, s48, s41\ns_and_b32 s68, s68, 1')
    e('s_lshl_b32 s54, s43, 15\ns_lshl_b32 s41, s52, 7\ns_add_u32 s54, s54, s41')
    e(f's_mul_i32 s55, s43, 122880\ns_mul_i32 s41, s48, 24576\ns_add_u32 s55, s55, s41')
    e(f's_lshr_b32 s63, s43, 1\ns_min_u32 s63, s63, 8\ns_lshl_b32 s63, s63, 7\ns_lshl_b32 s41, s14, 11\ns_add_u32 s63, s63, s41\ns_add_u32 s63, s63, {FA_OFF}')
    e('v_bfe_u32 v21, v0, 3, 1\nv_lshrrev_b32 v22, 4, v0\nv_lshl_add_u32 v21, v21, 2, v22\nv_lshlrev_b32 v21, 11, v21')
    e('s_lshl_b32 s41, s3, 23\nv_add_u32 v21, s41, v21\nv_and_b32 v22, 7, v0')
    for t in range(4):
        e(f'v_xor_b32 v23, {2*t}, v22\nv_lshl_add_u32 v23, v23, 4, v21')
        e(f'v_add_u32 v{VW+t}, {(t << 20) - t * 1024}, v23\nv_add_u32 v{VW+4+t}, {((t + 4) << 20) - t * 1024}, v23')
    e('s_lshl_b32 s56, s3, 13\ns_add_u32 s57, s56, 98304')
    for i, S in enumerate(sorted(set(cfg.splits))):
        r = (2 - (2 * S - 1)) % 3
        if i == 0: e(f's_mov_b32 s50, {r*32768}\ns_mov_b32 s64, {(r+1)%3*32768}\ns_mov_b32 s51, {(r+2)%3*32768}')
        else: e(f's_cmp_eq_u32 s58, {S}\ns_cselect_b32 s50, {r*32768}, s50\ns_cselect_b32 s64, {(r+1)%3*32768}, s64\ns_cselect_b32 s51, {(r+2)%3*32768}, s51')
    e('s_add_u32 s50, s50, s56\ns_add_u32 s64, s64, s56\ns_add_u32 s51, s51, s56')
    e('s_and_b32 s62, s60, 15\ns_lshr_b64 s[60:61], s[60:61], 4\ns_lshl_b32 s65, s62, 15\ns_add_u32 s65, s65, s54')
    e('s_cmp_eq_u32 s68, 1\ns_cselect_b32 s69, s64, s50\ns_cselect_b32 s64, s50, s64\ns_lshl_b32 s68, s68, 14\ns_add_u32 s65, s65, s68')
    wload = lambda t: f'buffer_load_dwordx4 v{VW+t}, {SW}, s65 offen offset:{(t&3)*1024} lds'
    xload = lambda t, v=3: f'buffer_load_dwordx4 v{v}, {SWS}, s45 offen offset:{t*1024} sc1 lds'
    def batch(where):
        n = 0
        for i, p in enumerate(cfg.batches):
            if p != where: continue
            if i == 2: e('s_xor_b32 s65, s65, 16384')
            e(f's_add_u32 m0, s{64 if i >> 1 else 69}, {(i & 1) * 4096}')
            for t in range(4): e(wload(4 * (i & 1) + t))
            n += 4
        return n
    nearly = batch('early')
    F0, F1, AB, D0, D1, T0 = 32, 72, 112, 152, 168, 184
    def fwd(dst, sg):
        e(f'v_and_b32 v8, 15, v0\nv_add_u32 v8, {sg}, v8\nv_lshl_add_u32 v8, v8, 1, 1\nv_cvt_f32_u32 v8, v8\nv_mul_f32 v8, {f32(1/320)}, v8')
        e('v_bfe_u32 v9, v0, 4, 1\nv_cvt_f32_u32 v9, v9\nv_mul_f32 v9, 0x3e800000, v9')
        e('v_lshrrev_b32 v10, 5, v0\nv_lshlrev_b32 v10, 3, v10\nv_cvt_f32_u32 v10, v10\nv_fma_f32 v9, v8, v10, v9')
        twiddles(e, dst, 8, 9, list(range(8)), T0)
    e('s_lshl_b32 s41, s3, 4')
    fwd(F0, 's41')
    if cfg.slowpre or cfg.batches[1] != 'pre': nearly += batch('pre')
    else:
        e('s_and_b32 s41, s52, 7\ns_cmp_eq_u32 s41, 3\ns_cbranch_scc1 L_nopre')
        batch('pre')
        e.label('L_nopre')
    e('s_cmp_lg_u32 s3, 0\ns_cbranch_scc1 L_a1')
    fwd(F1, '64')
    e.label('L_a1')
    e('v_lshrrev_b32 v10, 5, v0\nv_bfe_u32 v11, v0, 2, 2\nv_lshl_add_u32 v10, v10, 3, v11\nv_lshlrev_b32 v10, 6, v10')
    e(f'v_bfe_u32 v11, v0, 4, 1\nv_lshl_add_u32 v10, v11, 5, v10\nv_and_b32 v11, 3, v0\nv_lshl_add_u32 v10, v11, 3, v10\nv_add_u32 v10, {XLDS}, v10')
    e('v_bfe_u32 v8, v0, 3, 1\nv_mul_u32_u24 v8, 12288, v8\nv_lshrrev_b32 v11, 5, v0\nv_lshl_add_u32 v8, v11, 11, v8')
    e('s_lshr_b32 s41, s39, 1\nv_and_b32 v11, 7, v0\nv_xor_b32 v11, s41, v11\nv_lshl_add_u32 v9, v11, 4, v8')
    e('v_bfe_u32 v11, v0, 4, 1\nv_cmp_eq_u32 vcc, 1, v11\nv_add_u32 v11, 1, v11\nv_lshl_add_u32 v8, v11, 12, v9\nv_cndmask_b32 v9, v7, v9, vcc')
    e(f's_mul_i32 s41, s40, {2*122880}\ns_mul_i32 s42, s3, 24576\ns_add_u32 s41, s41, s42\ns_lshl_b32 s42, s39, 7\ns_add_u32 s41, s41, s42')
    e('s_add_u32 s42, s41, 122880\ns_mov_b32 s43, 0x80008000')
    stamp(1)
    if not cfg.slowpre and cfg.batches[1] == 'pre':
        e(f's_and_b32 s44, s52, 7\ns_cmp_eq_u32 s44, 3\ns_waitcnt vmcnt({nearly + 4})\ns_cbranch_scc0 L_xok\ns_waitcnt vmcnt({nearly})'); e.label('L_xok')
        e('s_waitcnt lgkmcnt(0)\ns_barrier')
    else: e(f's_waitcnt vmcnt({nearly}) lgkmcnt(0)\ns_barrier')
    def rd(kk):
        for h in range(2): e(f'ds_read_b64_tr_b16 v[{AB+4*kk+2*h}:{AB+4*kk+2*h+1}], v10 offset:{kk*1024+h*256}')
    for kk in range(6): rd(kk)
    batch('mid')
    e(f's_mul_i32 s{TAG}, s46, 0x9E3779B1\ns_add_u32 s{TAG}, s{TAG}, 0x7F4A7C15\ns_mul_i32 s{TAG+1}, s47, 0x85EBCA6B\ns_add_u32 s{TAG+1}, s{TAG+1}, s{TAG}')
    def dft(d, f, reads):
        for kk in range(10):
            e(f'v_mfma_f32_32x32x16_bf16 v[{d}:{d+15}], v[{AB+4*kk}:{AB+4*kk+3}], v[{f+4*kk}:{f+4*kk+3}], ' + ('0' if kk == 0 else f'v[{d}:{d+15}]'))
            if reads and kk + 6 < 10: rd(kk + 6)
    def put(d, t):
        for i in range(8): e(f'v_cvt_pk_bf16_f32 v{t+i}, v{d+2*i}, v{d+2*i+1}')
        e(f'buffer_store_dwordx4 v[{t}:{t+3}], v8, {SWS}, s41 offen sc1\nbuffer_store_dwordx4 v[{t+4}:{t+7}], v8, {SWS}, s42 offen sc1')
        for i in range(8): e(f'v_xor_b32 v{t+8+i}, s43, v{t+i}')
        e(f'buffer_store_dwordx4 v[{t+8}:{t+11}], v9, {SWS}, s41 offen sc1\nbuffer_store_dwordx4 v[{t+12}:{t+15}], v9, {SWS}, s42 offen sc1')
    dft(D0, F0, True)
    e('s_cmp_lg_u32 s3, 0\ns_cbranch_scc1 L_a2')
    dft(D1, F1, False)
    put(D0, TMP)
    e(f's_add_u32 s41, s41, {4*24576}\ns_add_u32 s42, s42, {4*24576}')
    put(D1, TMP + 16)
    e('s_branch L_a3')
    e.label('L_a2'); e('s_nop 11')
    put(D0, TMP)
    e.label('L_a3')
    stamp(2)
    e('s_mul_i32 s41, s3, 3072\nv_lshlrev_b32 v20, 4, v0\nv_add_u32 v20, s41, v20\nv_mov_b32 v3, v7')
    e(f's_add_u32 s53, s41, {XBASE}')
    e('s_and_b32 s41, s58, 1\ns_mul_i32 s41, s41, 24576\ns_add_u32 s41, s41, s53\ns_mov_b32 s45, 0')
    for h in range(2):
        e(f's_add_u32 m0, s41, {h*12288}')
        for t in range(3): e(xload(t))
    nlate = batch('late')
    for i in range(4): e(f'v_mov_b32 v{F+i}, 0')
    Z = f'v[{F}:{F+3}]'
    zero = [f'a[{16*i}:{16*i+15}]' for i in range(12)] + [f'v[{DD+16*i}:{DD+16*i+15}]' for i in range(1, 12)]
    def zfill(k=1):
        for _ in range(k):
            if zero: e(f'v_mfma_f32_32x32x16_bf16 {zero.pop()}, {Z}, {Z}, 0')
    e('v_bfe_u32 v21, v0, 4, 1\nv_lshrrev_b32 v22, 5, v0\nv_sub_u32 v22, 1, v22\nv_lshlrev_b32 v22, 12, v22\nv_lshl_add_u32 v22, v21, 11, v22'); zfill()
    e(f'v_and_b32 v21, 15, v0\nv_lshl_add_u32 v22, v21, 7, v22\nv_add_u32 v22, {XBASE}, v22\nv_lshrrev_b32 v21, 1, v21'); zfill()
    for i in range(8):
        e(f'v_xor_b32 v23, {i}, v21\nv_lshl_add_u32 v{VX+i}, v23, 4, v22')
        if i % 2: zfill()
    e('v_and_b32 v21, 3, v0\nv_bfe_u32 v22, v0, 3, 2\nv_lshl_add_u32 v21, v22, 2, v21\ns_lshl_b32 s41, s48, 4\nv_add_u32 v21, s41, v21'); zfill()
    e(f'v_lshl_add_u32 v21, v21, 1, 1\nv_cvt_f32_u32 v21, v21\nv_mul_f32 v21, {f32(1/320)}, v21')
    e('v_bfe_u32 v22, v0, 2, 1\nv_cvt_f32_u32 v22, v22'); zfill()
    e('v_mul_f32 v22, 0x3e800000, v22\nv_lshrrev_b32 v23, 5, v0\nv_lshlrev_b32 v23, 3, v23\nv_cvt_f32_u32 v1, v23\nv_fma_f32 v22, v21, v1, v22'); zfill()
    for i, c in enumerate([16 * kk + j for kk in range(2) for j in range(8)]):
        e(f'v_fmamk_f32 v{DD+i}, v21, {f32(c)}, v22')
        if i % 4 == 3: zfill()
    for i in range(16):
        e(f'v_cos_f32 v{DD+i}, v{DD+i}')
        if i % 3 == 2: zfill()
    e('v_bfe_u32 v21, v0, 2, 2\nv_add_u32 v23, v23, v21\nv_lshlrev_b32 v1, 10, v23\nv_xor_b32 v21, s3, v21\nv_lshl_add_u32 v1, v21, 5, v1'); zfill()
    e('v_bfe_u32 v21, v0, 4, 1\nv_lshl_add_u32 v1, v21, 7, v1\nv_and_b32 v22, 3, v0\nv_lshl_add_u32 v1, v22, 3, v1\nv_subrev_u32 v1, s56, v1\nv_add_u32 v2, s50, v1'); zfill(24)
    for i in range(8): e(f'v_cvt_pk_bf16_f32 v{F+i}, v{DD+2*i}, v{DD+2*i+1}')
    for i in range(8): e(f'v_mov_b64 v[{DD+2*i}:{DD+2*i+1}], 0')
    e(f's_lshl_b32 s41, s40, 4\ns_add_u32 s41, s41, s39\ns_lshl_b32 s41, s41, 3\ns_add_u32 s41, s41, {FA_OFF}\nv_lshlrev_b32 v21, 11, v0')
    e(f's_waitcnt vmcnt({nlate})\ns_barrier')
    e('s_cmp_lg_u32 s3, 1\ns_cbranch_scc1 L_a4')
    e(f'v_mov_b32 v22, s{TAG}\nv_mov_b32 v23, s{TAG+1}\ns_mov_b64 exec, 0xff\nbuffer_store_dwordx2 v[22:23], v21, {SWS}, s41 offen sc1\ns_mov_b64 exec, -1')
    e.label('L_a4')
    stamp(3)
    e('v_lshrrev_b32 v21, 3, v0\nv_bfe_u32 v22, v21, 1, 1\nv_lshlrev_b32 v22, 2, v22\nv_and_b32 v23, 7, v0\nv_xor_b32 v22, v22, v23')
    e(f'v_lshlrev_b32 v21, 10, v21\nv_lshl_add_u32 v{TMP}, v22, 4, v21')
    for t in range(1, 4): e(f'v_add_u32 v{TMP+t}, {t*7168}, v{TMP}')
    e('s_and_b32 s66, s15, 7\ns_lshl_b32 s66, s66, 7\ns_lshl_b32 s41, s3, 16\ns_add_u32 s66, s66, s41')
    oload = lambda t: f'buffer_load_dwordx4 v{TMP+(t&3)}, {SWO}, s66 offen offset:{(t&3)*1024} lds'
    if not cfg.slowpre and cfg.batches[1] == 'pre':
        e('s_and_b32 s41, s52, 7\ns_cmp_eq_u32 s41, 3\ns_cbranch_scc0 L_hadpre')
        batch('pre')
        e('s_mov_b32 s68, 1')
        e.label('L_hadpre')
    e('s_cmp_eq_u32 s59, 1\ns_cbranch_scc1 L_helper')
    npost = batch('post')
    if cfg.trace: e('s_mov_b32 s96, 0\nv_mov_b32 v240, 0')
    e('s_lshr_b32 s42, s58, 1\ns_mov_b32 s67, 1')
    e('s_cmp_eq_u32 s68, 0\ns_cbranch_scc1 L_b0\ns_waitcnt vmcnt(0)'); e.label('L_b0')
    if cfg.batches[1] in ('late', 'post'): e('s_waitcnt vmcnt(8)')
    e('s_bitcmp1_b32 s58, 0\ns_cbranch_scc0 L_phase2')

    def interval(ph, rdw=True, ldw='w', ldx=True, maxT=8, maxC=8, rda=True, units=range(8)):
        post = []
        if cfg.trace: e('s_memrealtime s[98:99]')
        if ldx:
            if ph % 2 == 0: post += ['s_mul_i32 s45, s62, 122880\ns_and_b32 s62, s60, 15', f's_add_u32 s45, s45, s55\ns_add_u32 m0, s53, {ph*12288}']
            else: post += [f's_add_u32 s45, s45, 12288\ns_add_u32 m0, s53, {ph*12288}']
            post += [xload(0), xload(1)]
            if ldw == 'w':
                if ph % 2 == 0: post += [xload(2) + ('\ns_mov_b32 s65, 0' if cfg.fakew else '\ns_lshl_b32 s65, s62, 15'), 's_add_u32 s65, s65, s54\ns_mov_b32 m0, s51']
                else: post += [xload(2) + '\ns_lshr_b64 s[60:61], s[60:61], 4', 's_add_u32 s65, s65, 16384\ns_mov_b32 m0, s51']
                post += [wload(t) for t in range(3)] + [wload(3) + '\ns_add_u32 m0, s51, 4096'] + [wload(t) for t in range(4, 8)]
            else:
                post += [xload(2), 's_mov_b32 m0, s51'] + [oload(t) for t in range(3)] + [oload(3) + '\ns_add_u32 m0, s51, 4096\ns_add_u32 s66, s66, 32768']
                post += [oload(t) for t in range(4, 7)] + [oload(7) + f'\ns_add_u32 s66, s66, {262144 - 32768}']
        if rdw: post += ['s_mov_b32 s51, s50\ns_add_u32 s50, s50, 32768', 's_cmp_eq_u32 s50, s57\ns_cselect_b32 s50, s56, s50']
        post += [''] * (2 * len(units) - len(post))
        ntr = [3, 3, 2, 2, 2, 2, 2, 0]; k = 0
        for i in units:
            U = (8 * ph + i - 2) % 32; s, u = U >> 4, U & 15; j, kk = u >> 1, u & 1
            if i < maxT:
                d = DD + 16 * (j & 3); w = W + 4 * (U % 8)
                e(f'v_mfma_f32_32x32x16_bf16 v[{d}:{d+15}], v[{F+4*kk}:{F+4*kk+3}], a[{w}:{w+3}], ' + ('0' if kk == 0 else f'v[{d}:{d+15}]'))
            if rdw:
                for _ in range(ntr[i]):
                    f, h = k >> 1, k & 1; r = W + 4 * f + 2 * h; k += 1
                    e(f'ds_read_b64_tr_b16 a[{r}:{r+1}], v2 offset:{(f & 1)*16384 + h*4096 + (f >> 1)*256}')
            if i < maxC:
                P = ((U >> 2) - 1) % 8; sp, p = P >> 2, P & 3; d0 = DD + 16 * ((2 * p) & 3)
                for x in range(4):
                    bn = 4 * (U & 3) + x
                    e(f'v_cvt_pk_bf16_f32 v{B+64*sp+4*bn+p}, v{d0+bn}, v{d0+16+bn}')
            for v in range(2):
                a = A + 4 * ((2 * U + v) % 8); c = ACC + 8 * u + 4 * v; b_ = B + 64 * (1 - s) + 4 * u
                e(f'v_mfma_f32_16x16x32_bf16 a[{c}:{c+3}], a[{a}:{a+3}], v[{b_}:{b_+3}], a[{c}:{c+3}]')
                if rda:
                    a2 = A + 4 * ((2 * (U + 2) + v) % 8)
                    e(f'ds_read_b128 a[{a2}:{a2+3}], v{VX+i} offset:{((ph + 2) % 4)*12288 + v*4096}')
                e(post.pop(0))
        assert not any(post)
        if rdw: e('v_add_u32 v2, s50, v1')
        if cfg.trace: e('s_mov_b32 m0, s96\ns_add_u32 s96, s96, 1\nv_writelane_b32 v240, s98, m0')
    def loop():
        for ph in range(4):
            if ph == 2: e.label('L_phase2', keep=True)
            e('s_barrier')
            interval(ph)
            if ph % 2 == 0:
                e(f's_cmp_lg_u32 s67, 0\ns_cbranch_scc1 L_hook{ph}'); e.label(f'L_back{ph}', keep=True)
            if ph == 3: e('s_sub_u32 s42, s42, 1\ns_cmp_lg_u32 s42, 0')
            e('s_waitcnt vmcnt(11) lgkmcnt(4)')
        e('s_cbranch_scc1 L_phase0')
    n = len(e.lines); loop(); del e.lines[n:]
    e.raw('.p2align 3'); e.label('L_phase0', keep=True)
    loop()
    e('s_barrier'); interval(0, ldw='o'); e('s_waitcnt vmcnt(11) lgkmcnt(4)')
    e('s_barrier'); interval(1, ldw='o'); e('s_waitcnt vmcnt(8)')
    e('s_barrier'); interval(2, rdw=False, ldx=False, maxT=2, maxC=6)
    interval(3, rdw=False, ldx=False, maxT=0, maxC=0)
    interval(0, rdw=False, ldx=False, maxT=0, maxC=0, rda=False, units=range(2))
    stamp(5)
    if cfg.trace:
        e(f's_lshl_b32 s41, s2, 2\ns_add_u32 s41, s41, s3\ns_lshl_b32 s41, s41, 8\ns_add_u32 s41, s41, {STAMP_OFF + (1 << 20)}\nv_lshlrev_b32 v21, 2, v0')
        e(f'buffer_store_dword v240, v21, {SWS}, s41 offen')
    e(f'v_lshrrev_b32 v21, 4, v0\nv_mul_u32_u24 v20, {4*983040}, v21\nv_and_b32 v21, 15, v0\nv_lshl_add_u32 v20, v21, 4, v20')
    e('s_lshl_b32 s40, s52, 1\ns_lshr_b32 s41, s3, 1\ns_add_u32 s40, s40, s41\ns_mul_i32 s40, s40, 3\ns_add_u32 s40, s40, s49\ns_mul_i32 s40, s40, 5')
    e(f's_add_u32 s40, s40, s48\ns_lshl_b32 s40, s40, 11\ns_and_b32 s41, s3, 1\ns_lshl_b32 s41, s41, 8\ns_add_u32 s40, s40, s41\ns_add_u32 s40, s40, {Y_OFF}')
    k = 0
    for hb in range(2):
        for r in range(4):
            e(f's_add_u32 s41, s40, {r*983040}')
            for pl in range(2):
                t = DD + 8 * (k % 2); o = B + 4 * k; k += 1
                for x in range(8): e(f'v_accvgpr_read_b32 v{t+x}, a{ACC+8*(8*hb+x)+4*pl+r}')
                for x in range(4): e(f'v_cvt_pk_bf16_f32 v{o+x}, v{t+2*x}, v{t+2*x+1}')
                e(f'buffer_store_dwordx4 v[{o}:{o+3}], v20, {SWS}, s41 offen offset:{hb*1024+pl*512} sc1')
    e('s_branch L_phasec')
    for ph in (0, 2):
        e.label(f'L_hook{ph}')
        e(f's_cmp_lg_u32 s3, 0\ns_cbranch_scc1 L_hook{ph}_go')
        poll(f'L_polla{ph}', 64, True, TMP + 4, 63)
        e.label(f'L_hook{ph}_go')
        e(f's_waitcnt vmcnt(11)\ns_barrier\nv_mov_b32 v3, v20\ns_mov_b32 s67, 0\ns_add_u32 m0, s53, {ph*12288}')
        stamp(4)
        for t in range(3): e(xload(t))
        e(f's_branch L_back{ph}')
    e.label('L_helper')
    if cfg.stamps: e('s_memrealtime s[80:81]\ns_memrealtime s[82:83]\ns_waitcnt lgkmcnt(0)')
    assert n0 == n1
    e('s_and_b32 s41, s15, 1\ns_lshl_b32 s41, s41, 3\ns_add_u32 s41, s41, s14\ns_lshl_b32 s41, s41, 2\ns_add_u32 s41, s41, s3')
    e('s_and_b32 s42, s41, 7\ns_lshl_b32 s42, s42, 2\ns_lshr_b32 s43, s41, 3')
    e('v_lshrrev_b32 v21, 4, v0\nv_add_u32 v21, s42, v21\nv_lshlrev_b32 v21, 20, v21\nv_and_b32 v22, 15, v0\nv_lshl_add_u32 v21, v22, 11, v21')
    nitem = (n0 - cfg.hstart) * 6 - 2 * (n0 - n2)
    for it in range(-(-nitem // 8)):
        e(f's_add_u32 s44, s43, {8*it}')
        if 8 * it + 8 > nitem: e(f's_cmp_ge_u32 s44, {nitem}\ns_cbranch_scc1 L_h1')
        e('s_mul_i32 s45, s44, 43\ns_lshr_b32 s45, s45, 8\ns_mul_i32 s46, s45, 6\ns_sub_u32 s46, s44, s46')
        e(f's_lshr_b32 s47, s46, 1\ns_mul_i32 s47, s47, {n0}\ns_add_u32 s45, s45, s47\ns_lshl_b32 s45, s45, 15')
        e(f's_and_b32 s46, s46, 1\ns_lshl_b32 s46, s46, 10\ns_add_u32 s45, s45, s46\ns_add_u32 s45, s45, {cfg.hstart*32768 + 384}')
        e(f'buffer_load_dword v{32+it}, v21, {SW}, s45 offen')
        if cfg.hsync == 'wait': e('s_waitcnt vmcnt(0)')
    e.label('L_h1')
    if cfg.wo_pf: e(f's_lshl_b32 s45, s41, 13\nv_lshlrev_b32 v21, 7, v0\nbuffer_load_dword v31, v21, {SWO}, s45 offen')
    e.label('L_h2')
    e('s_waitcnt vmcnt(0)\ns_barrier')
    stamp(5)
    for h in range(2):
        for t in range(8):
            if t % 4 == 0: e(f's_add_u32 m0, s56, {h*32768 + t*1024}')
            e(oload(t))
            if t % 4 == 3: e(f's_add_u32 s66, s66, {32768 if t == 3 else 262144 - 32768}')
    e.label('L_phasec')
    G, YA, CA, WO = 32, 72, 120, 0
    e('s_lshl_b32 s39, s14, 1\ns_lshr_b32 s40, s15, 4\ns_add_u32 s39, s39, s40\ns_and_b32 s40, s15, 15')
    e(f'v_and_b32 v8, 31, v0\ns_lshl_b32 s41, s3, 5\ns_add_u32 s41, s41, 32\nv_add_u32 v8, s41, v8\nv_cvt_f32_u32 v8, v8\nv_mul_f32 v8, {f32(1/320)}, v8')
    e('v_lshrrev_b32 v9, 5, v0\nv_cvt_f32_u32 v9, v9\nv_mul_f32 v9, 0x3e800000, v9')
    twiddles(e, G, 8, 9, [2 * j + 1 for j in range(8)], 184)
    e('v_lshrrev_b32 v21, 1, v0\nv_lshlrev_b32 v21, 12, v21\nv_and_b32 v22, 1, v0\nv_lshl_add_u32 v21, v22, 8, v21')
    e('s_lshr_b32 s41, s52, 3\ns_mul_i32 s41, s41, 15\ns_mul_i32 s42, s49, 5\ns_add_u32 s41, s41, s42\ns_add_u32 s41, s41, s48\ns_lshl_b32 s41, s41, 3')
    e(f's_and_b32 s42, s52, 7\ns_lshl_b32 s42, s42, 9\ns_add_u32 s41, s41, s42\ns_add_u32 s41, s41, {FB_OFF}')
    e(f's_lshl_b32 s43, s39, 4\ns_add_u32 s43, s43, s40\ns_lshl_b32 s42, s43, 8\ns_add_u32 s42, s42, {FB_OFF}')
    e('s_and_b32 s44, s3, 1\ns_lshr_b32 s45, s3, 1')
    e('s_lshl_b32 s46, s39, 5\ns_add_u32 s46, s46, s40\ns_lshl_b32 s47, s44, 4\ns_add_u32 s46, s46, s47')
    e(f's_mul_i32 s46, s46, 30\ns_add_u32 s46, s46, s45\ns_lshl_b32 s46, s46, 10\ns_add_u32 s46, s46, {Y_OFF}')
    e('v_lshlrev_b32 v2, 4, v0\nv_add_u32 v3, 0x10000, v2\ns_lshl_b32 s47, s3, 10\ns_add_u32 s47, s47, 0x10000')
    e('v_lshrrev_b32 v7, 5, v0\nv_bfe_u32 v8, v0, 2, 2\nv_lshl_add_u32 v7, v7, 2, v8\nv_lshlrev_b32 v4, 7, v7')
    e('v_bfe_u32 v7, v0, 4, 1\nv_and_b32 v8, 1, v0\nv_lshl_add_u32 v7, v7, 1, v8\nv_bfe_u32 v8, v0, 3, 1\nv_xor_b32 v8, s44, v8\nv_lshl_add_u32 v7, v8, 2, v7')
    e('v_lshl_add_u32 v4, v7, 4, v4\nv_bfe_u32 v7, v0, 1, 1\nv_lshl_add_u32 v4, v7, 3, v4')
    e('s_waitcnt vmcnt(0)\ns_barrier')
    stamp(6)
    e('s_cmp_lg_u32 s3, 0\ns_cbranch_scc1 L_c1')
    e('s_cmp_eq_u32 s59, 1\ns_cbranch_scc1 L_c0')
    publish(32, 21, 41)
    e.label('L_c0')
    poll('L_pollb', 30, False, TMP + 4, 42)
    e.label('L_c1')
    e('s_barrier')
    stamp(7)
    for i in range(15):
        e(f's_add_u32 m0, s47, {i*4096}\ns_add_u32 s41, s46, {i*2048}\nbuffer_load_dwordx4 v2, {SWS}, s41 offen sc1 lds')
    for ks in range(32):
        for h in range(2): e(f'ds_read_b64_tr_b16 a[{WO+4*ks+2*h}:{WO+4*ks+2*h+1}], v4 offset:{ks*2048+h*1024}')
    e(f's_lshl_b32 s50, s39, 2\ns_add_u32 s50, s50, s3\ns_lshl_b32 s50, s50, 5\ns_lshl_b32 s41, s40, 1\ns_add_u32 s50, s50, s41\ns_lshl_b32 s50, s50, 10\ns_add_u32 s50, s50, {Z_OFF}')
    e('s_waitcnt lgkmcnt(0)')
    for ch in range(5):
        e(f's_waitcnt vmcnt({12-3*ch})\ns_barrier')
        for x in range(12): e(f'ds_read_b128 v[{YA+4*x}:{YA+4*x+3}], v3 offset:{(12*ch+x)*1024}')
        for x in range(12):
            ph = 12 * ch + x; m, side = ph >> 1, ph & 1; kb = m % 10; c = CA + 16 * side
            e(f'v_mfma_f32_32x32x16_bf16 v[{c}:{c+15}], v[{YA+4*x}:{YA+4*x+3}], v[{G+4*kb}:{G+4*kb+3}], ' + ('0' if m == 0 else f'v[{c}:{c+15}]'))
    stamp(8)
    L2E = 1.4426950408889634
    f_, g_, t_ = CA, CA + 16, YA
    for i in range(16): e(f'v_mul_f32 v{t_+i}, {f32(2*L2E/80)}, v{f_+i}\nv_mul_f32 v{g_+i}, {f32(-L2E/80)}, v{g_+i}')
    for i in range(16): e(f'v_exp_f32 v{t_+i}, v{t_+i}\nv_exp_f32 v{g_+i}, v{g_+i}')
    for i in range(16): e(f'v_add_f32 v{t_+i}, 1.0, v{t_+i}\nv_add_f32 v{g_+i}, 1.0, v{g_+i}')
    for i in range(16): e(f'v_rcp_f32 v{t_+i}, v{t_+i}\nv_rcp_f32 v{g_+i}, v{g_+i}')
    for i in range(16): e(f'v_fma_f32 v{t_+i}, v{t_+i}, -2.0, 1.0')
    for i in range(16): e(f'v_mul_f32 v{f_+i}, v{t_+i}, v{g_+i}')
    for i in range(8): e(f'v_cvt_pk_bf16_f32 v{12+i}, v{f_+2*i}, v{f_+2*i+1}')
    e(f'buffer_store_dwordx4 v[12:15], v2, {SWS}, s50 offen sc1\nbuffer_store_dwordx4 v[16:19], v2, {SWS}, s50 offen offset:1024 sc1')
    e(f'v_lshlrev_b32 v21, 7, v0\ns_lshl_b32 s41, s39, 11\ns_lshl_b32 s42, s40, 3\ns_add_u32 s41, s41, s42\ns_add_u32 s41, s41, {FC_OFF}')
    e(f's_lshl_b32 s42, s43, 7\ns_add_u32 s42, s42, {FC_OFF}')
    e('s_lshl_b32 s46, s39, 1\ns_lshr_b32 s47, s40, 3\ns_add_u32 s46, s46, s47\ns_and_b32 s47, s40, 7')
    e(f's_lshl_b32 s50, s46, 16\ns_lshl_b32 s51, s45, 15\ns_lshl_b32 s53, s44, 12\ns_add_u32 s51, s51, s53\ns_add_u32 s50, s50, s51\ns_add_u32 s50, s50, {Z_OFF}')
    e('s_add_u32 s51, s51, 0x10000\ns_lshl_b32 s53, s45, 15\nv_add_u32 v5, s53, v3')
    e('s_lshr_b32 s54, s46, 4\ns_bfe_u32 s55, s46, 0x10003\ns_and_b32 s56, s46, 7\ns_lshl_b32 s56, s56, 6\ns_lshl_b32 s57, s45, 5\ns_add_u32 s56, s56, s57')
    e('s_mul_i32 s54, s54, 1000\ns_add_u32 s54, s54, s55\ns_lshl_b32 s54, s54, 10\ns_lshl_b32 s55, s47, 7\ns_add_u32 s54, s54, s55\ns_lshl_b32 s55, s44, 6\ns_add_u32 s54, s54, s55')
    e('v_and_b32 v7, 31, v0\nv_add_u32 v7, s56, v7\nv_lshrrev_b32 v8, 5, v0\nv_lshlrev_b32 v8, 4, v8\nv_add_u32 v8, s54, v8\nv_lshl_add_u32 v6, v7, 11, v8')
    e(f'v_mov_b32 v9, {BIG}\ns_movk_i32 s55, 500\nv_cmp_gt_u32 vcc, s55, v7\nv_cndmask_b32 v6, v9, v6, vcc')
    e('s_waitcnt vmcnt(0)\ns_barrier')
    stamp(9)
    e('s_cmp_lg_u32 s3, 0\ns_cbranch_scc1 L_d1')
    publish(16, 21, 41)
    poll('L_pollc', 16, False, TMP + 4, 42)
    e.label('L_d1')
    e('s_barrier')
    stamp(10)
    for ch in range(4):
        e(f's_add_u32 m0, s51, {8*ch*1024}\ns_add_u32 s41, s50, {8*ch*1024}')
        for x in range(4): e(f'buffer_load_dwordx4 v2, {SWS}, s41 offen offset:{x*1024} sc1 lds')
    ZB, OA = 32, 96
    for ch in range(4):
        e(f's_waitcnt vmcnt({12-4*ch})\ns_barrier')
        zb = ZB + 32 * (ch & 1)
        for x in range(8): e(f'ds_read_b128 v[{zb+4*x}:{zb+4*x+3}], v5 offset:{(8*ch+x)*1024}')
        for x in range(8):
            ks = 8 * ch + x
            e(f'v_mfma_f32_32x32x16_bf16 v[{OA}:{OA+15}], a[{WO+4*ks}:{WO+4*ks+3}], v[{zb+4*x}:{zb+4*x+3}], ' + ('0' if ks == 0 else f'v[{OA}:{OA+15}]'))
    for i in range(8): e(f'v_cvt_pk_bf16_f32 v{12+i}, v{OA+2*i}, v{OA+2*i+1}')
    e(f'buffer_store_dwordx4 v[12:15], v6, {SOUT}, 0 offen\nbuffer_store_dwordx4 v[16:19], v6, {SOUT}, 0 offen offset:32')
    e('s_or_b32 s41, s2, s3\ns_cmp_lg_u32 s41, 0\ns_cbranch_scc1 L_fin')
    e(f'v_mov_b32 v21, 0\ns_mov_b32 s41, {EP_OFF}')
    publish(1, 21, 41)
    e.label('L_fin')
    if cfg.stamps:
        e('s_waitcnt vmcnt(0)\ns_memrealtime s[94:95]\ns_waitcnt lgkmcnt(0)')
        for i in range(12): e(f'v_mov_b32 v{8+i}, s{72+2*i}')
        e(f's_lshl_b32 s41, s2, 2\ns_add_u32 s41, s41, s3\ns_lshl_b32 s41, s41, 6\ns_add_u32 s41, s41, {STAMP_OFF}\nv_mov_b32 v6, 0')
        for i in range(3): e(f'buffer_store_dwordx4 v[{8+4*i}:{11+4*i}], v6, {SWS}, s41 offen offset:{16*i}')
    e.label('L_end'); e('s_endpgm')
    out = '; @launch grid=(256,1,1) block=(256,1,1) lds=159744\n.amdgcn_target "amdgcn-amd-amdhsa--gfx950"\n.text\n' + e.text()
    out += '.section .rodata,"a"\n' + kernel_desc(NAME, 448, sgpr=100, accum=256) + '\n'
    open(path, 'w').write(out)

if __name__ == '__main__':
    kw = {}
    for a in sys.argv[2:]:
        k, v = a.split('=', 1); kw[k] = eval(v)
    generate(sys.argv[1], Cfg(**kw))
```

```python
import sys, struct
from emit import Emit, kernel_desc

NAME = 'standalone__autoregressive_conv_wavenet__speech_kernel'
XB, WB, WOB, OB, WSB = 2048000, 31 * 512 * 1024 * 2, 512 * 512 * 2, 2048000, 256 << 20
XF_OFF, Y_OFF, Z_OFF = 0, 4 << 20, 24 << 20
FA_OFF, FB_OFF, FC_OFF, EP_OFF = 28 << 20, (28 << 20) + 0x10000, (28 << 20) + 0x20000, (28 << 20) + 0x30000
STAMP_OFF = 128 << 20
BIG = 0x7ff00000
SX, SW, SWS, SWO, SOUT = 's[16:19]', 's[20:23]', 's[24:27]', 's[28:31]', 's[32:35]'
TAG = 36
SPIN = 1 << 14
def f32(x): return '0x%08x' % struct.unpack('<I', struct.pack('<f', x))[0]

class Cfg:
    stamps = False
    splits = (11, 11, 10)
    order = None
    batches = ('early', 'pre', 'post', 'post')
    leaders = (4, 0, 1, 2, 3)
    wo_pf = 1
    hsync = 'none'
    slownat = 0
    hstart = 3
    slowpre = 0
    lead = 1
    x_aux = 'nt'
    fakew = 0
    trace = 0
    diag = None
    helper = None
    def __init__(self, **kw): self.__dict__.update(kw)

def step_order(cfg, g, slow, S):
    o = [g & 1]
    sched = {} if slow else {x: (cfg.leaders[(x - 2) % 5], cfg.lead + x - 2) for x in range(2, S)}
    for p in range(1, S):
        mine = [x for x, (lg, lp) in sched.items() if lg == g and lp <= p and x not in o]
        o.append(mine[0] if mine else min(y for y in range(S) if y not in o))
    return o

def srd(e, d, base, nbytes):
    e(f's_mov_b32 s{d}, s{base}\ns_mov_b32 s{d+1}, s{base+1}\ns_mov_b32 s{d+2}, {nbytes}\ns_mov_b32 s{d+3}, 0x00020000')

def twiddles(e, dst, mul, base, c0, t, fill=lambda: None):
    e(f'v_mul_f32 v{t+24}, {f32(16.0)}, v{mul}\nv_cos_f32 v{t+24}, v{t+24}')
    for b in range(2):
        for j in range(8): e(f'v_fmamk_f32 v{t+8*b+j}, v{mul}, {f32(c0[j] + 16 * b)}, v{base}')
        for j in range(8): e(f'v_cos_f32 v{t+8*b+j}, v{t+8*b+j}')
    e(f'v_add_f32 v{t+24}, v{t+24}, v{t+24}')
    for b in range(10):
        r = t + 8 * (b % 3)
        if b >= 2:
            for j in range(8): e(f'v_fma_f32 v{r+j}, v{t+24}, v{t+8*((b-1)%3)+j}, -v{t+8*((b-2)%3)+j}')
        for j in range(0, 8, 2): e(f'v_cvt_pk_bf16_f32 v{dst+4*b+j//2}, v{r+j}, v{r+j+1}')

def generate(path, cfg):
    e = Emit()
    def stamp(k):
        if cfg.stamps: e(f's_memrealtime s[{72+2*k}:{73+2*k}]\ns_waitcnt lgkmcnt(0)')
    def publish(lanes, voff, soff):
        e(f'v_mov_b32 v222, s{TAG}\nv_mov_b32 v223, s{TAG+1}\ns_mov_b32 exec_lo, {(1 << lanes) - 1}\ns_mov_b32 exec_hi, 0')
        e(f'buffer_store_dwordx2 v[222:223], v{voff}, {SWS}, s{soff} offen sc1\ns_mov_b64 exec, -1')
    def poll(lbl, lanes, wide, tmp, soff):
        e(f'v_lshlrev_b32 v{tmp+4}, {4 if wide else 3}, v0\ns_mov_b32 s38, 0')
        if lanes < 64: e(f's_mov_b32 exec_lo, {(1 << lanes) - 1}\ns_mov_b32 exec_hi, 0')
        e.label(lbl)
        e(f'buffer_load_dwordx{4 if wide else 2} v[{tmp}:{tmp+(3 if wide else 1)}], v{tmp+4}, {SWS}, s{soff} offen sc1')
        e(f's_add_u32 s38, s38, 1\ns_waitcnt vmcnt(0)\nv_cmp_ne_u64 vcc, s[{TAG}:{TAG+1}], v[{tmp}:{tmp+1}]')
        if wide: e(f'v_cmp_ne_u64 s[70:71], s[{TAG}:{TAG+1}], v[{tmp+2}:{tmp+3}]\ns_nop 1\ns_or_b64 vcc, vcc, s[70:71]')
        e(f's_cmp_ge_u32 s38, {SPIN}\ns_cbranch_scc1 {lbl}_out\ns_cbranch_vccnz {lbl}')
        e.label(lbl + '_out')
        e('s_mov_b64 exec, -1')

    XBASE, XLDS = 3 * 32768, 147456
    n0, n1, n2 = cfg.splits
    VX, VW, F, DD, B, TMP = 4, 12, 24, 32, 96, 224
    ACC, W, A = 0, 128, 160
    e.raw(f'.globl {NAME}\n.p2align 8\n.type {NAME},@function'); e.label(NAME)
    e('s_cmp_ge_u32 s2, 256\ns_cbranch_scc1 L_end')
    if cfg.stamps: e('s_memrealtime s[72:73]')
    e('s_load_dwordx4 s[4:7], s[0:1], 0\ns_load_dwordx4 s[8:11], s[0:1], 16\ns_load_dwordx2 s[12:13], s[0:1], 40')
    e('v_lshrrev_b32 v1, 6, v0\nv_and_b32 v0, 63, v0\nv_readfirstlane_b32 s3, v1')
    e('s_and_b32 s14, s2, 7\ns_lshr_b32 s15, s2, 3')
    e('s_lshr_b32 s39, s15, 1\ns_and_b32 s40, s15, 1\ns_lshl_b32 s41, s14, 1\ns_add_u32 s40, s40, s41')
    e('s_lshr_b32 s41, s39, 3\ns_bfe_u32 s42, s39, 0x10002\ns_and_b32 s43, s39, 3')
    e('s_lshl_b32 s43, s43, 7\ns_sub_u32 s43, s43, 32')
    e('s_mul_i32 s41, s41, 1000\ns_add_u32 s41, s41, s42\ns_lshl_b32 s41, s41, 10\ns_lshl_b32 s42, s40, 6\ns_add_u32 s41, s41, s42')
    e('v_lshrrev_b32 v2, 2, v0\ns_lshl_b32 s42, s3, 4\ns_add_u32 s42, s42, s43\nv_add_u32 v2, s42, v2')
    e('v_and_b32 v3, 3, v0\nv_lshlrev_b32 v3, 4, v3\nv_add_u32 v3, s41, v3')
    e(f'v_mov_b32 v7, {BIG}\ns_movk_i32 s41, 500\ns_cmp_lt_u32 s3, 2\ns_cselect_b32 s42, s41, 0')
    for m in range(3):
        if m: e('v_add_u32 v2, 64, v2')
        e(f'v_lshl_add_u32 v{4+m}, v2, 11, v3\nv_cmp_gt_u32 vcc, s{42 if m == 2 else 41}, v2\nv_cndmask_b32 v{4+m}, v7, v{4+m}, vcc')
    e(f's_lshl_b32 s41, s3, 10\ns_add_u32 s41, s41, {XLDS}')
    e('s_waitcnt lgkmcnt(0)')
    srd(e, 16, 4, XB)
    for m in range(3):
        e(f's_add_u32 m0, s41, {m*4096}')
        if m == 0: e(f's_add_u32 s44, s12, {EP_OFF}')
        if m == 1: e('s_nop 0')
        if m == 2: e('s_nop 0')
        e(f'buffer_load_dwordx4 v{4+m}, {SX}, 0 offen {cfg.x_aux} lds')
        if m == 0: e(f's_addc_u32 s45, s13, 0\ns_load_dwordx2 s[46:47], s[44:45], 0')
    srd(e, 20, 6, WB); srd(e, 24, 12, WSB); srd(e, 28, 8, WOB); srd(e, 32, 10, OB)
    e('s_mul_i32 s41, s15, 52\ns_lshr_b32 s41, s41, 8\ns_mul_i32 s48, s41, 5\ns_sub_u32 s48, s15, s48')
    e('s_cmp_ge_u32 s15, 30\ns_cselect_b32 s59, 1, 0\ns_min_u32 s41, s41, 5')
    e('s_mul_i32 s43, s14, 6\ns_add_u32 s42, s43, s41\ns_add_u32 s41, s43, 4\ns_and_b32 s41, s41, 0x38\ns_add_u32 s41, s41, 3')
    e('s_cmp_ge_u32 s15, 30\ns_cselect_b32 s42, s41, s42\ns_lshr_b32 s49, s42, 4\ns_and_b32 s52, s42, 15')
    e(f's_mov_b32 s43, 0\ns_mov_b32 s58, {n0}')
    e(f's_cmp_eq_u32 s49, 1\ns_cselect_b32 s43, {n0}, s43\ns_cselect_b32 s58, {n1}, s58')
    e(f's_cmp_eq_u32 s49, 2\ns_cselect_b32 s43, {n0+n1}, s43\ns_cselect_b32 s58, {n2}, s58')
    pack = lambda o: sum(x << (4 * i) for i, x in enumerate(o))
    e('s_lshl_b32 s41, s58, 3\ns_add_u32 s41, s41, s48\ns_mov_b64 s[60:61], 0')
    for S in sorted(set(cfg.splits)):
        for g in range(5):
            v = pack(step_order(cfg, g, 0, S))
            e(f's_cmp_eq_u32 s41, {S*8+g}\ns_cselect_b32 s60, {v & 0xffffffff}, s60\ns_cselect_b32 s61, {v >> 32}, s61')
    v0, v1 = (pack(step_order(cfg, g, 1, max(cfg.splits))) for g in range(2))
    if cfg.slownat: e(f's_bitcmp1_b32 s48, 0\ns_mov_b32 s42, {v0 & 0xffffffff}\ns_cselect_b32 s42, {v1 & 0xffffffff}, s42')
    if cfg.slownat: e(f's_and_b32 s41, s52, 7\ns_cmp_eq_u32 s41, 3\ns_cselect_b32 s60, s42, s60\ns_cselect_b32 s61, {v0 >> 32}, s61')
    e('s_cmp_eq_u32 s59, 1\ns_cselect_b32 s60, 2, s60\ns_cselect_b32 s41, 0, 1\ns_lshr_b32 s68, s48, s41\ns_and_b32 s68, s68, 1')
    e('s_lshl_b32 s54, s43, 15\ns_lshl_b32 s41, s52, 7\ns_add_u32 s54, s54, s41')
    e(f's_mul_i32 s55, s43, 122880\ns_mul_i32 s41, s48, 24576\ns_add_u32 s55, s55, s41')
    e(f's_lshr_b32 s63, s43, 1\ns_min_u32 s63, s63, 8\ns_lshl_b32 s63, s63, 7\ns_lshl_b32 s41, s14, 11\ns_add_u32 s63, s63, s41\ns_add_u32 s63, s63, {FA_OFF}')
    e('v_bfe_u32 v21, v0, 3, 1\nv_lshrrev_b32 v22, 4, v0\nv_lshl_add_u32 v21, v21, 2, v22\nv_lshlrev_b32 v21, 11, v21')
    e('s_lshl_b32 s41, s3, 23\nv_add_u32 v21, s41, v21\nv_and_b32 v22, 7, v0')
    for t in range(4):
        e(f'v_xor_b32 v23, {2*t}, v22\nv_lshl_add_u32 v23, v23, 4, v21')
        e(f'v_add_u32 v{VW+t}, {(t << 20) - t * 1024}, v23\nv_add_u32 v{VW+4+t}, {((t + 4) << 20) - t * 1024}, v23')
    e('s_lshl_b32 s56, s3, 13\ns_add_u32 s57, s56, 98304')
    for i, S in enumerate(sorted(set(cfg.splits))):
        r = (2 - (2 * S - 1)) % 3
        if i == 0: e(f's_mov_b32 s50, {r*32768}\ns_mov_b32 s64, {(r+1)%3*32768}\ns_mov_b32 s51, {(r+2)%3*32768}')
        else: e(f's_cmp_eq_u32 s58, {S}\ns_cselect_b32 s50, {r*32768}, s50\ns_cselect_b32 s64, {(r+1)%3*32768}, s64\ns_cselect_b32 s51, {(r+2)%3*32768}, s51')
    e('s_add_u32 s50, s50, s56\ns_add_u32 s64, s64, s56\ns_add_u32 s51, s51, s56')
    e('s_and_b32 s62, s60, 15\ns_lshr_b64 s[60:61], s[60:61], 4\ns_lshl_b32 s65, s62, 15\ns_add_u32 s65, s65, s54')
    e('s_cmp_eq_u32 s68, 1\ns_cselect_b32 s69, s64, s50\ns_cselect_b32 s64, s50, s64\ns_lshl_b32 s68, s68, 14\ns_add_u32 s65, s65, s68')
    wload = lambda t: f'buffer_load_dwordx4 v{VW+t}, {SW}, s65 offen offset:{(t&3)*1024} lds'
    xload = lambda t, v=3: f'buffer_load_dwordx4 v{v}, {SWS}, s45 offen offset:{t*1024} sc1 lds'
    def batch(where):
        n = 0
        for i, p in enumerate(cfg.batches):
            if p != where: continue
            if i == 2: e('s_xor_b32 s65, s65, 16384')
            e(f's_add_u32 m0, s{64 if i >> 1 else 69}, {(i & 1) * 4096}')
            for t in range(4): e(wload(4 * (i & 1) + t))
            n += 4
        return n
    nearly = batch('early')
    F0, F1, AB, D0, D1, T0 = 32, 72, 112, 152, 168, 184
    def fwd(dst, sg):
        e(f'v_and_b32 v8, 15, v0\nv_add_u32 v8, {sg}, v8\nv_lshl_add_u32 v8, v8, 1, 1\nv_cvt_f32_u32 v8, v8\nv_mul_f32 v8, {f32(1/320)}, v8')
        e('v_bfe_u32 v9, v0, 4, 1\nv_cvt_f32_u32 v9, v9\nv_mul_f32 v9, 0x3e800000, v9')
        e('v_lshrrev_b32 v10, 5, v0\nv_lshlrev_b32 v10, 3, v10\nv_cvt_f32_u32 v10, v10\nv_fma_f32 v9, v8, v10, v9')
        twiddles(e, dst, 8, 9, list(range(8)), T0)
    e('s_lshl_b32 s41, s3, 4')
    fwd(F0, 's41')
    if cfg.slowpre or cfg.batches[1] != 'pre': nearly += batch('pre')
    else:
        e('s_and_b32 s41, s52, 7\ns_cmp_eq_u32 s41, 3\ns_cbranch_scc1 L_nopre')
        batch('pre')
        e.label('L_nopre')
    e('s_cmp_lg_u32 s3, 0\ns_cbranch_scc1 L_a1')
    fwd(F1, '64')
    e.label('L_a1')
    e('v_lshrrev_b32 v10, 5, v0\nv_bfe_u32 v11, v0, 2, 2\nv_lshl_add_u32 v10, v10, 3, v11\nv_lshlrev_b32 v10, 6, v10')
    e(f'v_bfe_u32 v11, v0, 4, 1\nv_lshl_add_u32 v10, v11, 5, v10\nv_and_b32 v11, 3, v0\nv_lshl_add_u32 v10, v11, 3, v10\nv_add_u32 v10, {XLDS}, v10')
    e('v_bfe_u32 v8, v0, 3, 1\nv_mul_u32_u24 v8, 12288, v8\nv_lshrrev_b32 v11, 5, v0\nv_lshl_add_u32 v8, v11, 11, v8')
    e('s_lshr_b32 s41, s39, 1\nv_and_b32 v11, 7, v0\nv_xor_b32 v11, s41, v11\nv_lshl_add_u32 v9, v11, 4, v8')
    e('v_bfe_u32 v11, v0, 4, 1\nv_cmp_eq_u32 vcc, 1, v11\nv_add_u32 v11, 1, v11\nv_lshl_add_u32 v8, v11, 12, v9\nv_cndmask_b32 v9, v7, v9, vcc')
    e(f's_mul_i32 s41, s40, {2*122880}\ns_mul_i32 s42, s3, 24576\ns_add_u32 s41, s41, s42\ns_lshl_b32 s42, s39, 7\ns_add_u32 s41, s41, s42')
    e('s_add_u32 s42, s41, 122880\ns_mov_b32 s43, 0x80008000')
    stamp(1)
    if not cfg.slowpre and cfg.batches[1] == 'pre':
        e(f's_and_b32 s44, s52, 7\ns_cmp_eq_u32 s44, 3\ns_waitcnt vmcnt({nearly + 4})\ns_cbranch_scc0 L_xok\ns_waitcnt vmcnt({nearly})'); e.label('L_xok')
        e('s_waitcnt lgkmcnt(0)\ns_barrier')
    else: e(f's_waitcnt vmcnt({nearly}) lgkmcnt(0)\ns_barrier')
    def rd(kk):
        for h in range(2): e(f'ds_read_b64_tr_b16 v[{AB+4*kk+2*h}:{AB+4*kk+2*h+1}], v10 offset:{kk*1024+h*256}')
    for kk in range(6): rd(kk)
    batch('mid')
    e(f's_mul_i32 s{TAG}, s46, 0x9E3779B1\ns_add_u32 s{TAG}, s{TAG}, 0x7F4A7C15\ns_mul_i32 s{TAG+1}, s47, 0x85EBCA6B\ns_add_u32 s{TAG+1}, s{TAG+1}, s{TAG}')
    def dft(d, f, reads):
        for kk in range(10):
            e(f'v_mfma_f32_32x32x16_bf16 v[{d}:{d+15}], v[{AB+4*kk}:{AB+4*kk+3}], v[{f+4*kk}:{f+4*kk+3}], ' + ('0' if kk == 0 else f'v[{d}:{d+15}]'))
            if reads and kk + 6 < 10: rd(kk + 6)
    def put(d, t):
        for i in range(8): e(f'v_cvt_pk_bf16_f32 v{t+i}, v{d+2*i}, v{d+2*i+1}')
        e(f'buffer_store_dwordx4 v[{t}:{t+3}], v8, {SWS}, s41 offen sc1\nbuffer_store_dwordx4 v[{t+4}:{t+7}], v8, {SWS}, s42 offen sc1')
        for i in range(8): e(f'v_xor_b32 v{t+8+i}, s43, v{t+i}')
        e(f'buffer_store_dwordx4 v[{t+8}:{t+11}], v9, {SWS}, s41 offen sc1\nbuffer_store_dwordx4 v[{t+12}:{t+15}], v9, {SWS}, s42 offen sc1')
    dft(D0, F0, True)
    e('s_cmp_lg_u32 s3, 0\ns_cbranch_scc1 L_a2')
    dft(D1, F1, False)
    put(D0, TMP)
    e(f's_add_u32 s41, s41, {4*24576}\ns_add_u32 s42, s42, {4*24576}')
    put(D1, TMP + 16)
    e('s_branch L_a3')
    e.label('L_a2'); e('s_nop 11')
    put(D0, TMP)
    e.label('L_a3')
    stamp(2)
    e('s_mul_i32 s41, s3, 3072\nv_lshlrev_b32 v20, 4, v0\nv_add_u32 v20, s41, v20\nv_mov_b32 v3, v7')
    e(f's_add_u32 s53, s41, {XBASE}')
    e('s_and_b32 s41, s58, 1\ns_mul_i32 s41, s41, 24576\ns_add_u32 s41, s41, s53\ns_mov_b32 s45, 0')
    for h in range(2):
        e(f's_add_u32 m0, s41, {h*12288}')
        for t in range(3): e(xload(t))
    nlate = batch('late')
    for i in range(4): e(f'v_mov_b32 v{F+i}, 0')
    Z = f'v[{F}:{F+3}]'
    zero = [f'a[{16*i}:{16*i+15}]' for i in range(12)] + [f'v[{DD+16*i}:{DD+16*i+15}]' for i in range(1, 12)]
    def zfill(k=1):
        for _ in range(k):
            if zero: e(f'v_mfma_f32_32x32x16_bf16 {zero.pop()}, {Z}, {Z}, 0')
    e('v_bfe_u32 v21, v0, 4, 1\nv_lshrrev_b32 v22, 5, v0\nv_sub_u32 v22, 1, v22\nv_lshlrev_b32 v22, 12, v22\nv_lshl_add_u32 v22, v21, 11, v22'); zfill()
    e(f'v_and_b32 v21, 15, v0\nv_lshl_add_u32 v22, v21, 7, v22\nv_add_u32 v22, {XBASE}, v22\nv_lshrrev_b32 v21, 1, v21'); zfill()
    for i in range(8):
        e(f'v_xor_b32 v23, {i}, v21\nv_lshl_add_u32 v{VX+i}, v23, 4, v22')
        if i % 2: zfill()
    e('v_and_b32 v21, 3, v0\nv_bfe_u32 v22, v0, 3, 2\nv_lshl_add_u32 v21, v22, 2, v21\ns_lshl_b32 s41, s48, 4\nv_add_u32 v21, s41, v21'); zfill()
    e(f'v_lshl_add_u32 v21, v21, 1, 1\nv_cvt_f32_u32 v21, v21\nv_mul_f32 v21, {f32(1/320)}, v21')
    e('v_bfe_u32 v22, v0, 2, 1\nv_cvt_f32_u32 v22, v22'); zfill()
    e('v_mul_f32 v22, 0x3e800000, v22\nv_lshrrev_b32 v23, 5, v0\nv_lshlrev_b32 v23, 3, v23\nv_cvt_f32_u32 v1, v23\nv_fma_f32 v22, v21, v1, v22'); zfill()
    for i, c in enumerate([16 * kk + j for kk in range(2) for j in range(8)]):
        e(f'v_fmamk_f32 v{DD+i}, v21, {f32(c)}, v22')
        if i % 4 == 3: zfill()
    for i in range(16):
        e(f'v_cos_f32 v{DD+i}, v{DD+i}')
        if i % 3 == 2: zfill()
    e('v_bfe_u32 v21, v0, 2, 2\nv_add_u32 v23, v23, v21\nv_lshlrev_b32 v1, 10, v23\nv_xor_b32 v21, s3, v21\nv_lshl_add_u32 v1, v21, 5, v1'); zfill()
    e('v_bfe_u32 v21, v0, 4, 1\nv_lshl_add_u32 v1, v21, 7, v1\nv_and_b32 v22, 3, v0\nv_lshl_add_u32 v1, v22, 3, v1\nv_subrev_u32 v1, s56, v1\nv_add_u32 v2, s50, v1'); zfill(24)
    for i in range(8): e(f'v_cvt_pk_bf16_f32 v{F+i}, v{DD+2*i}, v{DD+2*i+1}')
    for i in range(8): e(f'v_mov_b64 v[{DD+2*i}:{DD+2*i+1}], 0')
    e(f's_lshl_b32 s41, s40, 4\ns_add_u32 s41, s41, s39\ns_lshl_b32 s41, s41, 3\ns_add_u32 s41, s41, {FA_OFF}\nv_lshlrev_b32 v21, 11, v0')
    e(f's_waitcnt vmcnt({nlate})\ns_barrier')
    e('s_cmp_lg_u32 s3, 1\ns_cbranch_scc1 L_a4')
    e(f'v_mov_b32 v22, s{TAG}\nv_mov_b32 v23, s{TAG+1}\ns_mov_b64 exec, 0xff\nbuffer_store_dwordx2 v[22:23], v21, {SWS}, s41 offen sc1\ns_mov_b64 exec, -1')
    e.label('L_a4')
    stamp(3)
    e('v_lshrrev_b32 v21, 3, v0\nv_bfe_u32 v22, v21, 1, 1\nv_lshlrev_b32 v22, 2, v22\nv_and_b32 v23, 7, v0\nv_xor_b32 v22, v22, v23')
    e(f'v_lshlrev_b32 v21, 10, v21\nv_lshl_add_u32 v{TMP}, v22, 4, v21')
    for t in range(1, 4): e(f'v_add_u32 v{TMP+t}, {t*7168}, v{TMP}')
    e('s_and_b32 s66, s15, 7\ns_lshl_b32 s66, s66, 7\ns_lshl_b32 s41, s3, 16\ns_add_u32 s66, s66, s41')
    oload = lambda t: f'buffer_load_dwordx4 v{TMP+(t&3)}, {SWO}, s66 offen offset:{(t&3)*1024} lds'
    if not cfg.slowpre and cfg.batches[1] == 'pre':
        e('s_and_b32 s41, s52, 7\ns_cmp_eq_u32 s41, 3\ns_cbranch_scc0 L_hadpre')
        batch('pre')
        e('s_mov_b32 s68, 1')
        e.label('L_hadpre')
    e('s_cmp_eq_u32 s59, 1\ns_cbranch_scc1 L_helper')
    npost = batch('post')
    if cfg.trace: e('s_mov_b32 s96, 0\nv_mov_b32 v240, 0')
    e('s_lshr_b32 s42, s58, 1\ns_mov_b32 s67, 1')
    e('s_cmp_eq_u32 s68, 0\ns_cbranch_scc1 L_b0\ns_waitcnt vmcnt(0)'); e.label('L_b0')
    if cfg.batches[1] in ('late', 'post'): e('s_waitcnt vmcnt(8)')
    e('s_bitcmp1_b32 s58, 0\ns_cbranch_scc0 L_phase2')

    def interval(ph, rdw=True, ldw='w', ldx=True, maxT=8, maxC=8, rda=True, units=range(8)):
        post = []
        if cfg.trace: e('s_memrealtime s[98:99]')
        if ldx:
            if ph % 2 == 0: post += ['s_mul_i32 s45, s62, 122880\ns_and_b32 s62, s60, 15', f's_add_u32 s45, s45, s55\ns_add_u32 m0, s53, {ph*12288}']
            else: post += [f's_add_u32 s45, s45, 12288\ns_add_u32 m0, s53, {ph*12288}']
            post += [xload(0), xload(1)]
            if ldw == 'w':
                if ph % 2 == 0: post += [xload(2) + ('\ns_mov_b32 s65, 0' if cfg.fakew else '\ns_lshl_b32 s65, s62, 15'), 's_add_u32 s65, s65, s54\ns_mov_b32 m0, s51']
                else: post += [xload(2) + '\ns_lshr_b64 s[60:61], s[60:61], 4', 's_add_u32 s65, s65, 16384\ns_mov_b32 m0, s51']
                post += [wload(t) for t in range(3)] + [wload(3) + '\ns_add_u32 m0, s51, 4096'] + [wload(t) for t in range(4, 8)]
            else:
                post += [xload(2), 's_mov_b32 m0, s51'] + [oload(t) for t in range(3)] + [oload(3) + '\ns_add_u32 m0, s51, 4096\ns_add_u32 s66, s66, 32768']
                post += [oload(t) for t in range(4, 7)] + [oload(7) + f'\ns_add_u32 s66, s66, {262144 - 32768}']
        if rdw: post += ['s_mov_b32 s51, s50\ns_add_u32 s50, s50, 32768', 's_cmp_eq_u32 s50, s57\ns_cselect_b32 s50, s56, s50']
        post += [''] * (2 * len(units) - len(post))
        ntr = [3, 3, 2, 2, 2, 2, 2, 0]; k = 0
        for i in units:
            U = (8 * ph + i - 2) % 32; s, u = U >> 4, U & 15; j, kk = u >> 1, u & 1
            if i < maxT:
                d = DD + 16 * (j & 3); w = W + 4 * (U % 8)
                e(f'v_mfma_f32_32x32x16_bf16 v[{d}:{d+15}], v[{F+4*kk}:{F+4*kk+3}], a[{w}:{w+3}], ' + ('0' if kk == 0 else f'v[{d}:{d+15}]'))
            if rdw:
                for _ in range(ntr[i]):
                    f, h = k >> 1, k & 1; r = W + 4 * f + 2 * h; k += 1
                    e(f'ds_read_b64_tr_b16 a[{r}:{r+1}], v2 offset:{(f & 1)*16384 + h*4096 + (f >> 1)*256}')
            if i < maxC:
                P = ((U >> 2) - 1) % 8; sp, p = P >> 2, P & 3; d0 = DD + 16 * ((2 * p) & 3)
                for x in range(4):
                    bn = 4 * (U & 3) + x
                    e(f'v_cvt_pk_bf16_f32 v{B+64*sp+4*bn+p}, v{d0+bn}, v{d0+16+bn}')
            for v in range(2):
                a = A + 4 * ((2 * U + v) % 8); c = ACC + 8 * u + 4 * v; b_ = B + 64 * (1 - s) + 4 * u
                e(f'v_mfma_f32_16x16x32_bf16 a[{c}:{c+3}], a[{a}:{a+3}], v[{b_}:{b_+3}], a[{c}:{c+3}]')
                if rda:
                    a2 = A + 4 * ((2 * (U + 2) + v) % 8)
                    e(f'ds_read_b128 a[{a2}:{a2+3}], v{VX+i} offset:{((ph + 2) % 4)*12288 + v*4096}')
                e(post.pop(0))
        assert not any(post)
        if rdw: e('v_add_u32 v2, s50, v1')
        if cfg.trace: e('s_mov_b32 m0, s96\ns_add_u32 s96, s96, 1\nv_writelane_b32 v240, s98, m0')
    def loop():
        for ph in range(4):
            if ph == 2: e.label('L_phase2', keep=True)
            e('s_barrier')
            interval(ph)
            if ph % 2 == 0:
                e(f's_cmp_lg_u32 s67, 0\ns_cbranch_scc1 L_hook{ph}'); e.label(f'L_back{ph}', keep=True)
            if ph == 3: e('s_sub_u32 s42, s42, 1\ns_cmp_lg_u32 s42, 0')
            e('s_waitcnt vmcnt(11) lgkmcnt(4)')
        e('s_cbranch_scc1 L_phase0')
    n = len(e.lines); loop(); del e.lines[n:]
    e.raw('.p2align 3'); e.label('L_phase0', keep=True)
    loop()
    e('s_barrier'); interval(0, ldw='o'); e('s_waitcnt vmcnt(11) lgkmcnt(4)')
    e('s_barrier'); interval(1, ldw='o'); e('s_waitcnt vmcnt(8)')
    e('s_barrier'); interval(2, rdw=False, ldx=False, maxT=2, maxC=6)
    interval(3, rdw=False, ldx=False, maxT=0, maxC=0)
    interval(0, rdw=False, ldx=False, maxT=0, maxC=0, rda=False, units=range(2))
    stamp(5)
    if cfg.trace:
        e(f's_lshl_b32 s41, s2, 2\ns_add_u32 s41, s41, s3\ns_lshl_b32 s41, s41, 8\ns_add_u32 s41, s41, {STAMP_OFF + (1 << 20)}\nv_lshlrev_b32 v21, 2, v0')
        e(f'buffer_store_dword v240, v21, {SWS}, s41 offen')
    e(f'v_lshrrev_b32 v21, 4, v0\nv_mul_u32_u24 v20, {4*983040}, v21\nv_and_b32 v21, 15, v0\nv_lshl_add_u32 v20, v21, 4, v20')
    e('s_lshl_b32 s40, s52, 1\ns_lshr_b32 s41, s3, 1\ns_add_u32 s40, s40, s41\ns_mul_i32 s40, s40, 3\ns_add_u32 s40, s40, s49\ns_mul_i32 s40, s40, 5')
    e(f's_add_u32 s40, s40, s48\ns_lshl_b32 s40, s40, 11\ns_and_b32 s41, s3, 1\ns_lshl_b32 s41, s41, 8\ns_add_u32 s40, s40, s41\ns_add_u32 s40, s40, {Y_OFF}')
    k = 0
    for hb in range(2):
        for r in range(4):
            e(f's_add_u32 s41, s40, {r*983040}')
            for pl in range(2):
                t = DD + 8 * (k % 2); o = B + 4 * k; k += 1
                for x in range(8): e(f'v_accvgpr_read_b32 v{t+x}, a{ACC+8*(8*hb+x)+4*pl+r}')
                for x in range(4): e(f'v_cvt_pk_bf16_f32 v{o+x}, v{t+2*x}, v{t+2*x+1}')
                e(f'buffer_store_dwordx4 v[{o}:{o+3}], v20, {SWS}, s41 offen offset:{hb*1024+pl*512} sc1')
    e('s_branch L_phasec')
    for ph in (0, 2):
        e.label(f'L_hook{ph}')
        e(f's_cmp_lg_u32 s3, 0\ns_cbranch_scc1 L_hook{ph}_go')
        poll(f'L_polla{ph}', 64, True, TMP + 4, 63)
        e.label(f'L_hook{ph}_go')
        e(f's_waitcnt vmcnt(11)\ns_barrier\nv_mov_b32 v3, v20\ns_mov_b32 s67, 0\ns_add_u32 m0, s53, {ph*12288}')
        stamp(4)
        for t in range(3): e(xload(t))
        e(f's_branch L_back{ph}')
    e.label('L_helper')
    if cfg.stamps: e('s_memrealtime s[80:81]\ns_memrealtime s[82:83]\ns_waitcnt lgkmcnt(0)')
    assert n0 == n1
    e('s_and_b32 s41, s15, 1\ns_lshl_b32 s41, s41, 3\ns_add_u32 s41, s41, s14\ns_lshl_b32 s41, s41, 2\ns_add_u32 s41, s41, s3')
    e('s_and_b32 s42, s41, 7\ns_lshl_b32 s42, s42, 2\ns_lshr_b32 s43, s41, 3')
    e('v_lshrrev_b32 v21, 4, v0\nv_add_u32 v21, s42, v21\nv_lshlrev_b32 v21, 20, v21\nv_and_b32 v22, 15, v0\nv_lshl_add_u32 v21, v22, 11, v21')
    nitem = (n0 - cfg.hstart) * 6 - 2 * (n0 - n2)
    for it in range(-(-nitem // 8)):
        e(f's_add_u32 s44, s43, {8*it}')
        if 8 * it + 8 > nitem: e(f's_cmp_ge_u32 s44, {nitem}\ns_cbranch_scc1 L_h1')
        e('s_mul_i32 s45, s44, 43\ns_lshr_b32 s45, s45, 8\ns_mul_i32 s46, s45, 6\ns_sub_u32 s46, s44, s46')
        e(f's_lshr_b32 s47, s46, 1\ns_mul_i32 s47, s47, {n0}\ns_add_u32 s45, s45, s47\ns_lshl_b32 s45, s45, 15')
        e(f's_and_b32 s46, s46, 1\ns_lshl_b32 s46, s46, 10\ns_add_u32 s45, s45, s46\ns_add_u32 s45, s45, {cfg.hstart*32768 + 384}')
        e(f'buffer_load_dword v{32+it}, v21, {SW}, s45 offen')
        if cfg.hsync == 'wait': e('s_waitcnt vmcnt(0)')
    e.label('L_h1')
    if cfg.wo_pf: e(f's_lshl_b32 s45, s41, 13\nv_lshlrev_b32 v21, 7, v0\nbuffer_load_dword v31, v21, {SWO}, s45 offen')
    e.label('L_h2')
    e('s_waitcnt vmcnt(0)\ns_barrier')
    stamp(5)
    for h in range(2):
        for t in range(8):
            if t % 4 == 0: e(f's_add_u32 m0, s56, {h*32768 + t*1024}')
            e(oload(t))
            if t % 4 == 3: e(f's_add_u32 s66, s66, {32768 if t == 3 else 262144 - 32768}')
    e.label('L_phasec')
    G, YA, CA, WO = 32, 72, 120, 0
    e('s_lshl_b32 s39, s14, 1\ns_lshr_b32 s40, s15, 4\ns_add_u32 s39, s39, s40\ns_and_b32 s40, s15, 15')
    e(f'v_and_b32 v8, 31, v0\ns_lshl_b32 s41, s3, 5\ns_add_u32 s41, s41, 32\nv_add_u32 v8, s41, v8\nv_cvt_f32_u32 v8, v8\nv_mul_f32 v8, {f32(1/320)}, v8')
    e('v_lshrrev_b32 v9, 5, v0\nv_cvt_f32_u32 v9, v9\nv_mul_f32 v9, 0x3e800000, v9')
    twiddles(e, G, 8, 9, [2 * j + 1 for j in range(8)], 184)
    e('v_lshrrev_b32 v21, 1, v0\nv_lshlrev_b32 v21, 12, v21\nv_and_b32 v22, 1, v0\nv_lshl_add_u32 v21, v22, 8, v21')
    e('s_lshr_b32 s41, s52, 3\ns_mul_i32 s41, s41, 15\ns_mul_i32 s42, s49, 5\ns_add_u32 s41, s41, s42\ns_add_u32 s41, s41, s48\ns_lshl_b32 s41, s41, 3')
    e(f's_and_b32 s42, s52, 7\ns_lshl_b32 s42, s42, 9\ns_add_u32 s41, s41, s42\ns_add_u32 s41, s41, {FB_OFF}')
    e(f's_lshl_b32 s43, s39, 4\ns_add_u32 s43, s43, s40\ns_lshl_b32 s42, s43, 8\ns_add_u32 s42, s42, {FB_OFF}')
    e('s_and_b32 s44, s3, 1\ns_lshr_b32 s45, s3, 1')
    e('s_lshl_b32 s46, s39, 5\ns_add_u32 s46, s46, s40\ns_lshl_b32 s47, s44, 4\ns_add_u32 s46, s46, s47')
    e(f's_mul_i32 s46, s46, 30\ns_add_u32 s46, s46, s45\ns_lshl_b32 s46, s46, 10\ns_add_u32 s46, s46, {Y_OFF}')
    e('v_lshlrev_b32 v2, 4, v0\nv_add_u32 v3, 0x10000, v2\ns_lshl_b32 s47, s3, 10\ns_add_u32 s47, s47, 0x10000')
    e('v_lshrrev_b32 v7, 5, v0\nv_bfe_u32 v8, v0, 2, 2\nv_lshl_add_u32 v7, v7, 2, v8\nv_lshlrev_b32 v4, 7, v7')
    e('v_bfe_u32 v7, v0, 4, 1\nv_and_b32 v8, 1, v0\nv_lshl_add_u32 v7, v7, 1, v8\nv_bfe_u32 v8, v0, 3, 1\nv_xor_b32 v8, s44, v8\nv_lshl_add_u32 v7, v8, 2, v7')
    e('v_lshl_add_u32 v4, v7, 4, v4\nv_bfe_u32 v7, v0, 1, 1\nv_lshl_add_u32 v4, v7, 3, v4')
    e('s_waitcnt vmcnt(0)\ns_barrier')
    stamp(6)
    e('s_cmp_lg_u32 s3, 0\ns_cbranch_scc1 L_c1')
    e('s_cmp_eq_u32 s59, 1\ns_cbranch_scc1 L_c0')
    publish(32, 21, 41)
    e.label('L_c0')
    poll('L_pollb', 30, False, TMP + 4, 42)
    e.label('L_c1')
    e('s_barrier')
    stamp(7)
    for i in range(15):
        e(f's_add_u32 m0, s47, {i*4096}\ns_add_u32 s41, s46, {i*2048}\nbuffer_load_dwordx4 v2, {SWS}, s41 offen sc1 lds')
    for ks in range(32):
        for h in range(2): e(f'ds_read_b64_tr_b16 a[{WO+4*ks+2*h}:{WO+4*ks+2*h+1}], v4 offset:{ks*2048+h*1024}')
    e(f's_lshl_b32 s50, s39, 2\ns_add_u32 s50, s50, s3\ns_lshl_b32 s50, s50, 5\ns_lshl_b32 s41, s40, 1\ns_add_u32 s50, s50, s41\ns_lshl_b32 s50, s50, 10\ns_add_u32 s50, s50, {Z_OFF}')
    e('s_waitcnt lgkmcnt(0)')
    for ch in range(5):
        e(f's_waitcnt vmcnt({12-3*ch})\ns_barrier')
        for x in range(12): e(f'ds_read_b128 v[{YA+4*x}:{YA+4*x+3}], v3 offset:{(12*ch+x)*1024}')
        for x in range(12):
            ph = 12 * ch + x; m, side = ph >> 1, ph & 1; kb = m % 10; c = CA + 16 * side
            e(f'v_mfma_f32_32x32x16_bf16 v[{c}:{c+15}], v[{YA+4*x}:{YA+4*x+3}], v[{G+4*kb}:{G+4*kb+3}], ' + ('0' if m == 0 else f'v[{c}:{c+15}]'))
    stamp(8)
    L2E = 1.4426950408889634
    f_, g_, t_ = CA, CA + 16, YA
    for i in range(16): e(f'v_mul_f32 v{t_+i}, {f32(2*L2E/80)}, v{f_+i}\nv_mul_f32 v{g_+i}, {f32(-L2E/80)}, v{g_+i}')
    for i in range(16): e(f'v_exp_f32 v{t_+i}, v{t_+i}\nv_exp_f32 v{g_+i}, v{g_+i}')
    for i in range(16): e(f'v_add_f32 v{t_+i}, 1.0, v{t_+i}\nv_add_f32 v{g_+i}, 1.0, v{g_+i}')
    for i in range(16): e(f'v_rcp_f32 v{t_+i}, v{t_+i}\nv_rcp_f32 v{g_+i}, v{g_+i}')
    for i in range(16): e(f'v_fma_f32 v{t_+i}, v{t_+i}, -2.0, 1.0')
    for i in range(16): e(f'v_mul_f32 v{f_+i}, v{t_+i}, v{g_+i}')
    for i in range(8): e(f'v_cvt_pk_bf16_f32 v{12+i}, v{f_+2*i}, v{f_+2*i+1}')
    e(f'buffer_store_dwordx4 v[12:15], v2, {SWS}, s50 offen sc1\nbuffer_store_dwordx4 v[16:19], v2, {SWS}, s50 offen offset:1024 sc1')
    e(f'v_lshlrev_b32 v21, 7, v0\ns_lshl_b32 s41, s39, 11\ns_lshl_b32 s42, s40, 3\ns_add_u32 s41, s41, s42\ns_add_u32 s41, s41, {FC_OFF}')
    e(f's_lshl_b32 s42, s43, 7\ns_add_u32 s42, s42, {FC_OFF}')
    e('s_lshl_b32 s46, s39, 1\ns_lshr_b32 s47, s40, 3\ns_add_u32 s46, s46, s47\ns_and_b32 s47, s40, 7')
    e(f's_lshl_b32 s50, s46, 16\ns_lshl_b32 s51, s45, 15\ns_lshl_b32 s53, s44, 12\ns_add_u32 s51, s51, s53\ns_add_u32 s50, s50, s51\ns_add_u32 s50, s50, {Z_OFF}')
    e('s_add_u32 s51, s51, 0x10000\ns_lshl_b32 s53, s45, 15\nv_add_u32 v5, s53, v3')
    e('s_lshr_b32 s54, s46, 4\ns_bfe_u32 s55, s46, 0x10003\ns_and_b32 s56, s46, 7\ns_lshl_b32 s56, s56, 6\ns_lshl_b32 s57, s45, 5\ns_add_u32 s56, s56, s57')
    e('s_mul_i32 s54, s54, 1000\ns_add_u32 s54, s54, s55\ns_lshl_b32 s54, s54, 10\ns_lshl_b32 s55, s47, 7\ns_add_u32 s54, s54, s55\ns_lshl_b32 s55, s44, 6\ns_add_u32 s54, s54, s55')
    e('v_and_b32 v7, 31, v0\nv_add_u32 v7, s56, v7\nv_lshrrev_b32 v8, 5, v0\nv_lshlrev_b32 v8, 4, v8\nv_add_u32 v8, s54, v8\nv_lshl_add_u32 v6, v7, 11, v8')
    e(f'v_mov_b32 v9, {BIG}\ns_movk_i32 s55, 500\nv_cmp_gt_u32 vcc, s55, v7\nv_cndmask_b32 v6, v9, v6, vcc')
    e('s_waitcnt vmcnt(0)\ns_barrier')
    stamp(9)
    e('s_cmp_lg_u32 s3, 0\ns_cbranch_scc1 L_d1')
    publish(16, 21, 41)
    poll('L_pollc', 16, False, TMP + 4, 42)
    e.label('L_d1')
    e('s_barrier')
    stamp(10)
    for ch in range(4):
        e(f's_add_u32 m0, s51, {8*ch*1024}\ns_add_u32 s41, s50, {8*ch*1024}')
        for x in range(4): e(f'buffer_load_dwordx4 v2, {SWS}, s41 offen offset:{x*1024} sc1 lds')
    ZB, OA = 32, 96
    for ch in range(4):
        e(f's_waitcnt vmcnt({12-4*ch})\ns_barrier')
        zb = ZB + 32 * (ch & 1)
        for x in range(8): e(f'ds_read_b128 v[{zb+4*x}:{zb+4*x+3}], v5 offset:{(8*ch+x)*1024}')
        for x in range(8):
            ks = 8 * ch + x
            e(f'v_mfma_f32_32x32x16_bf16 v[{OA}:{OA+15}], a[{WO+4*ks}:{WO+4*ks+3}], v[{zb+4*x}:{zb+4*x+3}], ' + ('0' if ks == 0 else f'v[{OA}:{OA+15}]'))
    for i in range(8): e(f'v_cvt_pk_bf16_f32 v{12+i}, v{OA+2*i}, v{OA+2*i+1}')
    e(f'buffer_store_dwordx4 v[12:15], v6, {SOUT}, 0 offen\nbuffer_store_dwordx4 v[16:19], v6, {SOUT}, 0 offen offset:32')
    e('s_or_b32 s41, s2, s3\ns_cmp_lg_u32 s41, 0\ns_cbranch_scc1 L_fin')
    e(f'v_mov_b32 v21, 0\ns_mov_b32 s41, {EP_OFF}')
    publish(1, 21, 41)
    e.label('L_fin')
    if cfg.stamps:
        e('s_waitcnt vmcnt(0)\ns_memrealtime s[94:95]\ns_waitcnt lgkmcnt(0)')
        for i in range(12): e(f'v_mov_b32 v{8+i}, s{72+2*i}')
        e(f's_lshl_b32 s41, s2, 2\ns_add_u32 s41, s41, s3\ns_lshl_b32 s41, s41, 6\ns_add_u32 s41, s41, {STAMP_OFF}\nv_mov_b32 v6, 0')
        for i in range(3): e(f'buffer_store_dwordx4 v[{8+4*i}:{11+4*i}], v6, {SWS}, s41 offen offset:{16*i}')
    e.label('L_end'); e('s_endpgm')
    if cfg.diag:
        k, mult, red = cfg.diag
        e.raw('.globl diag_kernel\n.p2align 8\n.type diag_kernel,@function'); e.label('diag_kernel')
        e('s_cmp_ge_u32 s2, 1\ns_cbranch_scc1 L_dend\ns_memrealtime s[20:21]\ns_load_dwordx2 s[12:13], s[0:1], 40\ns_waitcnt lgkmcnt(0)')
        srd(e, 24, 12, WSB)
        e(f'v_min_u32 v0, 59, v0\nv_lshlrev_b32 v1, 8, v0\nv_add_u32 v1, {STAMP_OFF}, v1')
        for i in range(4):
            e(f's_mov_b32 s30, {i*60*256}\nbuffer_load_dword v{4+i}, v1, {SWS}, s30 offen sc1\nbuffer_load_dword v{8+i}, v1, {SWS}, s30 offen offset:{4*k} sc1')
        e('s_waitcnt vmcnt(0)')
        for i in range(1, 4): e(f'v_min_u32 v4, v4, v{4+i}\nv_{red}_u32 v8, v8, v{8+i}')
        e('s_nop 1\nv_readlane_b32 s22, v4, 0\nv_readlane_b32 s23, v8, 0')
        for l in range(1, 60): e(f'v_readlane_b32 s30, v4, {l}\nv_readlane_b32 s31, v8, {l}\ns_nop 1\ns_min_u32 s22, s22, s30\ns_{red}_u32 s23, s23, s31')
        e(f's_sub_u32 s22, s23, s22\ns_min_u32 s22, s22, 20000\ns_mul_i32 s22, s22, {mult}\ns_add_u32 s22, s22, 300')
        e.label('L_diag')
        e('s_memrealtime s[28:29]\ns_waitcnt lgkmcnt(0)\ns_sub_u32 s28, s28, s20\ns_cmp_lt_u32 s28, s22\ns_cbranch_scc1 L_diag')
        e.label('L_dend'); e('s_endpgm')
        out = f'; @launch kernel={NAME} grid=(256,1,1) block=(256,1,1) lds=159744\n; @launch kernel=diag_kernel grid=(1,1,1) block=(64,1,1) lds=0\n'
        out += '.amdgcn_target "amdgcn-amd-amdhsa--gfx950"\n.text\n' + e.text()
        out += '.section .rodata,"a"\n' + kernel_desc(NAME, 448, sgpr=100, accum=256) + '\n' + kernel_desc('diag_kernel', 16) + '\n'
        open(path, 'w').write(out); return
    out = '; @launch grid=(256,1,1) block=(256,1,1) lds=159744\n.amdgcn_target "amdgcn-amd-amdhsa--gfx950"\n.text\n' + e.text()
    out += '.section .rodata,"a"\n' + kernel_desc(NAME, 448, sgpr=100, accum=256) + '\n'
    open(path, 'w').write(out)

if __name__ == '__main__':
    kw = {}
    for a in sys.argv[2:]:
        k, v = a.split('=', 1); kw[k] = eval(v)
    generate(sys.argv[1], Cfg(**kw))
```

```python
import sys, struct
from emit import Emit, kernel_desc

NAME = 'standalone__autoregressive_conv_wavenet__speech_kernel'
XB, WB, WOB, OB, WSB = 2048000, 31 * 512 * 1024 * 2, 512 * 512 * 2, 2048000, 256 << 20
XF_OFF, Y_OFF, Z_OFF = 0, 4 << 20, 24 << 20
FA_OFF, FB_OFF, FC_OFF, EP_OFF = 28 << 20, (28 << 20) + 0x10000, (28 << 20) + 0x20000, (28 << 20) + 0x30000
STAMP_OFF = 128 << 20
BIG = 0x7ff00000
SX, SW, SWS, SWO, SOUT = 's[16:19]', 's[20:23]', 's[24:27]', 's[28:31]', 's[32:35]'
TAG = 36
SPIN = 1 << 14
def f32(x): return '0x%08x' % struct.unpack('<I', struct.pack('<f', x))[0]

class Cfg:
    stamps = False
    splits = (11, 11, 10)
    order = None
    batches = ('early', 'pre', 'post', 'post')
    leaders = (4, 0, 1, 2, 3)
    wo_pf = 1
    hsync = 'none'
    slownat = 0
    hstart = 3
    slowpre = 0
    lead = 1
    x_aux = 'nt'
    fakew = 0
    trace = 0
    out_aux = ''
    codepf = 2
    diag = None
    helper = None
    def __init__(self, **kw): self.__dict__.update(kw)

def step_order(cfg, g, slow, S):
    o = [g & 1]
    sched = {} if slow else {x: (cfg.leaders[(x - 2) % 5], cfg.lead + x - 2) for x in range(2, S)}
    for p in range(1, S):
        mine = [x for x, (lg, lp) in sched.items() if lg == g and lp <= p and x not in o]
        o.append(mine[0] if mine else min(y for y in range(S) if y not in o))
    return o

def srd(e, d, base, nbytes):
    e(f's_mov_b32 s{d}, s{base}\ns_mov_b32 s{d+1}, s{base+1}\ns_mov_b32 s{d+2}, {nbytes}\ns_mov_b32 s{d+3}, 0x00020000')

def twiddles(e, dst, mul, base, c0, t, fill=lambda: None):
    e(f'v_mul_f32 v{t+24}, {f32(16.0)}, v{mul}\nv_cos_f32 v{t+24}, v{t+24}')
    for b in range(2):
        for j in range(8): e(f'v_fmamk_f32 v{t+8*b+j}, v{mul}, {f32(c0[j] + 16 * b)}, v{base}')
        for j in range(8): e(f'v_cos_f32 v{t+8*b+j}, v{t+8*b+j}')
    e(f'v_add_f32 v{t+24}, v{t+24}, v{t+24}')
    for b in range(10):
        r = t + 8 * (b % 3)
        if b >= 2:
            for j in range(8): e(f'v_fma_f32 v{r+j}, v{t+24}, v{t+8*((b-1)%3)+j}, -v{t+8*((b-2)%3)+j}')
        for j in range(0, 8, 2): e(f'v_cvt_pk_bf16_f32 v{dst+4*b+j//2}, v{r+j}, v{r+j+1}')

def generate(path, cfg):
    e = Emit()
    def stamp(k):
        if cfg.stamps: e(f's_memrealtime s[{72+2*k}:{73+2*k}]\ns_waitcnt lgkmcnt(0)')
    def publish(lanes, voff, soff):
        e(f'v_mov_b32 v222, s{TAG}\nv_mov_b32 v223, s{TAG+1}\ns_mov_b32 exec_lo, {(1 << lanes) - 1}\ns_mov_b32 exec_hi, 0')
        e(f'buffer_store_dwordx2 v[222:223], v{voff}, {SWS}, s{soff} offen sc1\ns_mov_b64 exec, -1')
    def poll(lbl, lanes, wide, tmp, soff):
        e(f'v_lshlrev_b32 v{tmp+4}, {4 if wide else 3}, v0\ns_mov_b32 s38, 0')
        if lanes < 64: e(f's_mov_b32 exec_lo, {(1 << lanes) - 1}\ns_mov_b32 exec_hi, 0')
        e.label(lbl)
        e(f'buffer_load_dwordx{4 if wide else 2} v[{tmp}:{tmp+(3 if wide else 1)}], v{tmp+4}, {SWS}, s{soff} offen sc1')
        e(f's_add_u32 s38, s38, 1\ns_waitcnt vmcnt(0)\nv_cmp_ne_u64 vcc, s[{TAG}:{TAG+1}], v[{tmp}:{tmp+1}]')
        if wide: e(f'v_cmp_ne_u64 s[70:71], s[{TAG}:{TAG+1}], v[{tmp+2}:{tmp+3}]\ns_nop 1\ns_or_b64 vcc, vcc, s[70:71]')
        e(f's_cmp_ge_u32 s38, {SPIN}\ns_cbranch_scc1 {lbl}_out\ns_cbranch_vccnz {lbl}')
        e.label(lbl + '_out')
        e('s_mov_b64 exec, -1')

    XBASE, XLDS = 3 * 32768, 147456
    n0, n1, n2 = cfg.splits
    VX, VW, F, DD, B, TMP = 4, 12, 24, 32, 96, 224
    ACC, W, A = 0, 128, 160
    e.raw(f'.globl {NAME}\n.p2align 8\n.type {NAME},@function'); e.label(NAME)
    e('s_cmp_ge_u32 s2, 256\ns_cbranch_scc1 L_end')
    if cfg.stamps: e('s_memrealtime s[72:73]')
    e('s_load_dwordx4 s[4:7], s[0:1], 0\ns_load_dwordx4 s[8:11], s[0:1], 16\ns_load_dwordx2 s[12:13], s[0:1], 40')
    if cfg.codepf:
        if cfg.codepf == 2: e('s_lshr_b32 s3, s2, 3\nv_lshl_add_u32 v25, v0, 5, s3')
        else: e('v_mov_b32 v25, v0')
        e('s_getpc_b64 s[14:15]\nv_min_u32 v25, (L_end-{N})/128, v25\nv_lshlrev_b32 v25, 7, v25\ns_and_b32 s14, s14, 0xffffff00'.replace('{N}', NAME))
        e('v_mov_b32 v27, s15\nv_add_co_u32 v26, vcc, s14, v25\ns_nop 1\nv_addc_co_u32 v27, vcc, 0, v27, vcc\nglobal_load_dword v28, v[26:27], off')
    e('v_lshrrev_b32 v1, 6, v0\nv_and_b32 v0, 63, v0\nv_readfirstlane_b32 s3, v1')
    e('s_and_b32 s14, s2, 7\ns_lshr_b32 s15, s2, 3')
    e('s_lshr_b32 s39, s15, 1\ns_and_b32 s40, s15, 1\ns_lshl_b32 s41, s14, 1\ns_add_u32 s40, s40, s41')
    e('s_lshr_b32 s41, s39, 3\ns_bfe_u32 s42, s39, 0x10002\ns_and_b32 s43, s39, 3')
    e('s_lshl_b32 s43, s43, 7\ns_sub_u32 s43, s43, 32')
    e('s_mul_i32 s41, s41, 1000\ns_add_u32 s41, s41, s42\ns_lshl_b32 s41, s41, 10\ns_lshl_b32 s42, s40, 6\ns_add_u32 s41, s41, s42')
    e('v_lshrrev_b32 v2, 2, v0\ns_lshl_b32 s42, s3, 4\ns_add_u32 s42, s42, s43\nv_add_u32 v2, s42, v2')
    e('v_and_b32 v3, 3, v0\nv_lshlrev_b32 v3, 4, v3\nv_add_u32 v3, s41, v3')
    e(f'v_mov_b32 v7, {BIG}\ns_movk_i32 s41, 500\ns_cmp_lt_u32 s3, 2\ns_cselect_b32 s42, s41, 0')
    for m in range(3):
        if m: e('v_add_u32 v2, 64, v2')
        e(f'v_lshl_add_u32 v{4+m}, v2, 11, v3\nv_cmp_gt_u32 vcc, s{42 if m == 2 else 41}, v2\nv_cndmask_b32 v{4+m}, v7, v{4+m}, vcc')
    e(f's_lshl_b32 s41, s3, 10\ns_add_u32 s41, s41, {XLDS}')
    e('s_waitcnt lgkmcnt(0)')
    srd(e, 16, 4, XB)
    for m in range(3):
        e(f's_add_u32 m0, s41, {m*4096}')
        if m == 0: e(f's_add_u32 s44, s12, {EP_OFF}')
        if m == 1: e('s_nop 0')
        if m == 2: e('s_nop 0')
        e(f'buffer_load_dwordx4 v{4+m}, {SX}, 0 offen {cfg.x_aux} lds')
        if m == 0: e(f's_addc_u32 s45, s13, 0\ns_load_dwordx2 s[46:47], s[44:45], 0')
    srd(e, 20, 6, WB); srd(e, 24, 12, WSB); srd(e, 28, 8, WOB); srd(e, 32, 10, OB)
    e('s_mul_i32 s41, s15, 52\ns_lshr_b32 s41, s41, 8\ns_mul_i32 s48, s41, 5\ns_sub_u32 s48, s15, s48')
    e('s_cmp_ge_u32 s15, 30\ns_cselect_b32 s59, 1, 0\ns_min_u32 s41, s41, 5')
    e('s_mul_i32 s43, s14, 6\ns_add_u32 s42, s43, s41\ns_add_u32 s41, s43, 4\ns_and_b32 s41, s41, 0x38\ns_add_u32 s41, s41, 3')
    e('s_cmp_ge_u32 s15, 30\ns_cselect_b32 s42, s41, s42\ns_lshr_b32 s49, s42, 4\ns_and_b32 s52, s42, 15')
    e(f's_mov_b32 s43, 0\ns_mov_b32 s58, {n0}')
    e(f's_cmp_eq_u32 s49, 1\ns_cselect_b32 s43, {n0}, s43\ns_cselect_b32 s58, {n1}, s58')
    e(f's_cmp_eq_u32 s49, 2\ns_cselect_b32 s43, {n0+n1}, s43\ns_cselect_b32 s58, {n2}, s58')
    pack = lambda o: sum(x << (4 * i) for i, x in enumerate(o))
    e('s_lshl_b32 s41, s58, 3\ns_add_u32 s41, s41, s48\ns_mov_b64 s[60:61], 0')
    for S in sorted(set(cfg.splits)):
        for g in range(5):
            v = pack(step_order(cfg, g, 0, S))
            e(f's_cmp_eq_u32 s41, {S*8+g}\ns_cselect_b32 s60, {v & 0xffffffff}, s60\ns_cselect_b32 s61, {v >> 32}, s61')
    v0, v1 = (pack(step_order(cfg, g, 1, max(cfg.splits))) for g in range(2))
    if cfg.slownat: e(f's_bitcmp1_b32 s48, 0\ns_mov_b32 s42, {v0 & 0xffffffff}\ns_cselect_b32 s42, {v1 & 0xffffffff}, s42')
    if cfg.slownat: e(f's_and_b32 s41, s52, 7\ns_cmp_eq_u32 s41, 3\ns_cselect_b32 s60, s42, s60\ns_cselect_b32 s61, {v0 >> 32}, s61')
    e('s_cmp_eq_u32 s59, 1\ns_cselect_b32 s60, 2, s60\ns_cselect_b32 s41, 0, 1\ns_lshr_b32 s68, s48, s41\ns_and_b32 s68, s68, 1')
    e('s_lshl_b32 s54, s43, 15\ns_lshl_b32 s41, s52, 7\ns_add_u32 s54, s54, s41')
    e(f's_mul_i32 s55, s43, 122880\ns_mul_i32 s41, s48, 24576\ns_add_u32 s55, s55, s41')
    e(f's_lshr_b32 s63, s43, 1\ns_min_u32 s63, s63, 8\ns_lshl_b32 s63, s63, 7\ns_lshl_b32 s41, s14, 11\ns_add_u32 s63, s63, s41\ns_add_u32 s63, s63, {FA_OFF}')
    e('v_bfe_u32 v21, v0, 3, 1\nv_lshrrev_b32 v22, 4, v0\nv_lshl_add_u32 v21, v21, 2, v22\nv_lshlrev_b32 v21, 11, v21')
    e('s_lshl_b32 s41, s3, 23\nv_add_u32 v21, s41, v21\nv_and_b32 v22, 7, v0')
    for t in range(4):
        e(f'v_xor_b32 v23, {2*t}, v22\nv_lshl_add_u32 v23, v23, 4, v21')
        e(f'v_add_u32 v{VW+t}, {(t << 20) - t * 1024}, v23\nv_add_u32 v{VW+4+t}, {((t + 4) << 20) - t * 1024}, v23')
    e('s_lshl_b32 s56, s3, 13\ns_add_u32 s57, s56, 98304')
    for i, S in enumerate(sorted(set(cfg.splits))):
        r = (2 - (2 * S - 1)) % 3
        if i == 0: e(f's_mov_b32 s50, {r*32768}\ns_mov_b32 s64, {(r+1)%3*32768}\ns_mov_b32 s51, {(r+2)%3*32768}')
        else: e(f's_cmp_eq_u32 s58, {S}\ns_cselect_b32 s50, {r*32768}, s50\ns_cselect_b32 s64, {(r+1)%3*32768}, s64\ns_cselect_b32 s51, {(r+2)%3*32768}, s51')
    e('s_add_u32 s50, s50, s56\ns_add_u32 s64, s64, s56\ns_add_u32 s51, s51, s56')
    e('s_and_b32 s62, s60, 15\ns_lshr_b64 s[60:61], s[60:61], 4\ns_lshl_b32 s65, s62, 15\ns_add_u32 s65, s65, s54')
    e('s_cmp_eq_u32 s68, 1\ns_cselect_b32 s69, s64, s50\ns_cselect_b32 s64, s50, s64\ns_lshl_b32 s68, s68, 14\ns_add_u32 s65, s65, s68')
    wload = lambda t: f'buffer_load_dwordx4 v{VW+t}, {SW}, s65 offen offset:{(t&3)*1024} lds'
    xload = lambda t, v=3: f'buffer_load_dwordx4 v{v}, {SWS}, s45 offen offset:{t*1024} sc1 lds'
    def batch(where):
        n = 0
        for i, p in enumerate(cfg.batches):
            if p != where: continue
            if i == 2: e('s_xor_b32 s65, s65, 16384')
            e(f's_add_u32 m0, s{64 if i >> 1 else 69}, {(i & 1) * 4096}')
            for t in range(4): e(wload(4 * (i & 1) + t))
            n += 4
        return n
    nearly = batch('early')
    F0, F1, AB, D0, D1, T0 = 32, 72, 112, 152, 168, 184
    def fwd(dst, sg):
        e(f'v_and_b32 v8, 15, v0\nv_add_u32 v8, {sg}, v8\nv_lshl_add_u32 v8, v8, 1, 1\nv_cvt_f32_u32 v8, v8\nv_mul_f32 v8, {f32(1/320)}, v8')
        e('v_bfe_u32 v9, v0, 4, 1\nv_cvt_f32_u32 v9, v9\nv_mul_f32 v9, 0x3e800000, v9')
        e('v_lshrrev_b32 v10, 5, v0\nv_lshlrev_b32 v10, 3, v10\nv_cvt_f32_u32 v10, v10\nv_fma_f32 v9, v8, v10, v9')
        twiddles(e, dst, 8, 9, list(range(8)), T0)
    e('s_lshl_b32 s41, s3, 4')
    fwd(F0, 's41')
    if cfg.slowpre or cfg.batches[1] != 'pre': nearly += batch('pre')
    else:
        e('s_and_b32 s41, s52, 7\ns_cmp_eq_u32 s41, 3\ns_cbranch_scc1 L_nopre')
        batch('pre')
        e.label('L_nopre')
    e('s_cmp_lg_u32 s3, 0\ns_cbranch_scc1 L_a1')
    fwd(F1, '64')
    e.label('L_a1')
    e('v_lshrrev_b32 v10, 5, v0\nv_bfe_u32 v11, v0, 2, 2\nv_lshl_add_u32 v10, v10, 3, v11\nv_lshlrev_b32 v10, 6, v10')
    e(f'v_bfe_u32 v11, v0, 4, 1\nv_lshl_add_u32 v10, v11, 5, v10\nv_and_b32 v11, 3, v0\nv_lshl_add_u32 v10, v11, 3, v10\nv_add_u32 v10, {XLDS}, v10')
    e('v_bfe_u32 v8, v0, 3, 1\nv_mul_u32_u24 v8, 12288, v8\nv_lshrrev_b32 v11, 5, v0\nv_lshl_add_u32 v8, v11, 11, v8')
    e('s_lshr_b32 s41, s39, 1\nv_and_b32 v11, 7, v0\nv_xor_b32 v11, s41, v11\nv_lshl_add_u32 v9, v11, 4, v8')
    e('v_bfe_u32 v11, v0, 4, 1\nv_cmp_eq_u32 vcc, 1, v11\nv_add_u32 v11, 1, v11\nv_lshl_add_u32 v8, v11, 12, v9\nv_cndmask_b32 v9, v7, v9, vcc')
    e(f's_mul_i32 s41, s40, {2*122880}\ns_mul_i32 s42, s3, 24576\ns_add_u32 s41, s41, s42\ns_lshl_b32 s42, s39, 7\ns_add_u32 s41, s41, s42')
    e('s_add_u32 s42, s41, 122880\ns_mov_b32 s43, 0x80008000')
    stamp(1)
    if not cfg.slowpre and cfg.batches[1] == 'pre':
        e(f's_and_b32 s44, s52, 7\ns_cmp_eq_u32 s44, 3\ns_waitcnt vmcnt({nearly + 4})\ns_cbranch_scc0 L_xok\ns_waitcnt vmcnt({nearly})'); e.label('L_xok')
        e('s_waitcnt lgkmcnt(0)\ns_barrier')
    else: e(f's_waitcnt vmcnt({nearly}) lgkmcnt(0)\ns_barrier')
    def rd(kk):
        for h in range(2): e(f'ds_read_b64_tr_b16 v[{AB+4*kk+2*h}:{AB+4*kk+2*h+1}], v10 offset:{kk*1024+h*256}')
    for kk in range(6): rd(kk)
    batch('mid')
    e(f's_mul_i32 s{TAG}, s46, 0x9E3779B1\ns_add_u32 s{TAG}, s{TAG}, 0x7F4A7C15\ns_mul_i32 s{TAG+1}, s47, 0x85EBCA6B\ns_add_u32 s{TAG+1}, s{TAG+1}, s{TAG}')
    def dft(d, f, reads):
        for kk in range(10):
            e(f'v_mfma_f32_32x32x16_bf16 v[{d}:{d+15}], v[{AB+4*kk}:{AB+4*kk+3}], v[{f+4*kk}:{f+4*kk+3}], ' + ('0' if kk == 0 else f'v[{d}:{d+15}]'))
            if reads and kk + 6 < 10: rd(kk + 6)
    def put(d, t):
        for i in range(8): e(f'v_cvt_pk_bf16_f32 v{t+i}, v{d+2*i}, v{d+2*i+1}')
        e(f'buffer_store_dwordx4 v[{t}:{t+3}], v8, {SWS}, s41 offen sc1\nbuffer_store_dwordx4 v[{t+4}:{t+7}], v8, {SWS}, s42 offen sc1')
        for i in range(8): e(f'v_xor_b32 v{t+8+i}, s43, v{t+i}')
        e(f'buffer_store_dwordx4 v[{t+8}:{t+11}], v9, {SWS}, s41 offen sc1\nbuffer_store_dwordx4 v[{t+12}:{t+15}], v9, {SWS}, s42 offen sc1')
    dft(D0, F0, True)
    e('s_cmp_lg_u32 s3, 0\ns_cbranch_scc1 L_a2')
    dft(D1, F1, False)
    put(D0, TMP)
    e(f's_add_u32 s41, s41, {4*24576}\ns_add_u32 s42, s42, {4*24576}')
    put(D1, TMP + 16)
    e('s_branch L_a3')
    e.label('L_a2'); e('s_nop 11')
    put(D0, TMP)
    e.label('L_a3')
    stamp(2)
    e('s_mul_i32 s41, s3, 3072\nv_lshlrev_b32 v20, 4, v0\nv_add_u32 v20, s41, v20\nv_mov_b32 v3, v7')
    e(f's_add_u32 s53, s41, {XBASE}')
    e('s_and_b32 s41, s58, 1\ns_mul_i32 s41, s41, 24576\ns_add_u32 s41, s41, s53\ns_mov_b32 s45, 0')
    for h in range(2):
        e(f's_add_u32 m0, s41, {h*12288}')
        for t in range(3): e(xload(t))
    nlate = batch('late')
    for i in range(4): e(f'v_mov_b32 v{F+i}, 0')
    Z = f'v[{F}:{F+3}]'
    zero = [f'a[{16*i}:{16*i+15}]' for i in range(12)] + [f'v[{DD+16*i}:{DD+16*i+15}]' for i in range(1, 12)]
    def zfill(k=1):
        for _ in range(k):
            if zero: e(f'v_mfma_f32_32x32x16_bf16 {zero.pop()}, {Z}, {Z}, 0')
    e('v_bfe_u32 v21, v0, 4, 1\nv_lshrrev_b32 v22, 5, v0\nv_sub_u32 v22, 1, v22\nv_lshlrev_b32 v22, 12, v22\nv_lshl_add_u32 v22, v21, 11, v22'); zfill()
    e(f'v_and_b32 v21, 15, v0\nv_lshl_add_u32 v22, v21, 7, v22\nv_add_u32 v22, {XBASE}, v22\nv_lshrrev_b32 v21, 1, v21'); zfill()
    for i in range(8):
        e(f'v_xor_b32 v23, {i}, v21\nv_lshl_add_u32 v{VX+i}, v23, 4, v22')
        if i % 2: zfill()
    e('v_and_b32 v21, 3, v0\nv_bfe_u32 v22, v0, 3, 2\nv_lshl_add_u32 v21, v22, 2, v21\ns_lshl_b32 s41, s48, 4\nv_add_u32 v21, s41, v21'); zfill()
    e(f'v_lshl_add_u32 v21, v21, 1, 1\nv_cvt_f32_u32 v21, v21\nv_mul_f32 v21, {f32(1/320)}, v21')
    e('v_bfe_u32 v22, v0, 2, 1\nv_cvt_f32_u32 v22, v22'); zfill()
    e('v_mul_f32 v22, 0x3e800000, v22\nv_lshrrev_b32 v23, 5, v0\nv_lshlrev_b32 v23, 3, v23\nv_cvt_f32_u32 v1, v23\nv_fma_f32 v22, v21, v1, v22'); zfill()
    for i, c in enumerate([16 * kk + j for kk in range(2) for j in range(8)]):
        e(f'v_fmamk_f32 v{DD+i}, v21, {f32(c)}, v22')
        if i % 4 == 3: zfill()
    for i in range(16):
        e(f'v_cos_f32 v{DD+i}, v{DD+i}')
        if i % 3 == 2: zfill()
    e('v_bfe_u32 v21, v0, 2, 2\nv_add_u32 v23, v23, v21\nv_lshlrev_b32 v1, 10, v23\nv_xor_b32 v21, s3, v21\nv_lshl_add_u32 v1, v21, 5, v1'); zfill()
    e('v_bfe_u32 v21, v0, 4, 1\nv_lshl_add_u32 v1, v21, 7, v1\nv_and_b32 v22, 3, v0\nv_lshl_add_u32 v1, v22, 3, v1\nv_subrev_u32 v1, s56, v1\nv_add_u32 v2, s50, v1'); zfill(24)
    for i in range(8): e(f'v_cvt_pk_bf16_f32 v{F+i}, v{DD+2*i}, v{DD+2*i+1}')
    for i in range(8): e(f'v_mov_b64 v[{DD+2*i}:{DD+2*i+1}], 0')
    e(f's_lshl_b32 s41, s40, 4\ns_add_u32 s41, s41, s39\ns_lshl_b32 s41, s41, 3\ns_add_u32 s41, s41, {FA_OFF}\nv_lshlrev_b32 v21, 11, v0')
    e(f's_waitcnt vmcnt({nlate})\ns_barrier')
    e('s_cmp_lg_u32 s3, 1\ns_cbranch_scc1 L_a4')
    e(f'v_mov_b32 v22, s{TAG}\nv_mov_b32 v23, s{TAG+1}\ns_mov_b64 exec, 0xff\nbuffer_store_dwordx2 v[22:23], v21, {SWS}, s41 offen sc1\ns_mov_b64 exec, -1')
    e.label('L_a4')
    stamp(3)
    e('v_lshrrev_b32 v21, 3, v0\nv_bfe_u32 v22, v21, 1, 1\nv_lshlrev_b32 v22, 2, v22\nv_and_b32 v23, 7, v0\nv_xor_b32 v22, v22, v23')
    e(f'v_lshlrev_b32 v21, 10, v21\nv_lshl_add_u32 v{TMP}, v22, 4, v21')
    for t in range(1, 4): e(f'v_add_u32 v{TMP+t}, {t*7168}, v{TMP}')
    e('s_and_b32 s66, s15, 7\ns_lshl_b32 s66, s66, 7\ns_lshl_b32 s41, s3, 16\ns_add_u32 s66, s66, s41')
    oload = lambda t: f'buffer_load_dwordx4 v{TMP+(t&3)}, {SWO}, s66 offen offset:{(t&3)*1024} lds'
    if not cfg.slowpre and cfg.batches[1] == 'pre':
        e('s_and_b32 s41, s52, 7\ns_cmp_eq_u32 s41, 3\ns_cbranch_scc0 L_hadpre')
        batch('pre')
        e('s_mov_b32 s68, 1')
        e.label('L_hadpre')
    e('s_cmp_eq_u32 s59, 1\ns_cbranch_scc1 L_helper')
    npost = batch('post')
    if cfg.trace: e('s_mov_b32 s96, 0\nv_mov_b32 v240, 0')
    e('s_lshr_b32 s42, s58, 1\ns_mov_b32 s67, 1')
    e('s_cmp_eq_u32 s68, 0\ns_cbranch_scc1 L_b0\ns_waitcnt vmcnt(0)'); e.label('L_b0')
    if cfg.batches[1] in ('late', 'post'): e('s_waitcnt vmcnt(8)')
    e('s_bitcmp1_b32 s58, 0\ns_cbranch_scc0 L_phase2')

    def interval(ph, rdw=True, ldw='w', ldx=True, maxT=8, maxC=8, rda=True, units=range(8)):
        post = []
        if cfg.trace: e('s_memrealtime s[98:99]')
        if ldx:
            if ph % 2 == 0: post += ['s_mul_i32 s45, s62, 122880\ns_and_b32 s62, s60, 15', f's_add_u32 s45, s45, s55\ns_add_u32 m0, s53, {ph*12288}']
            else: post += [f's_add_u32 s45, s45, 12288\ns_add_u32 m0, s53, {ph*12288}']
            post += [xload(0), xload(1)]
            if ldw == 'w':
                if ph % 2 == 0: post += [xload(2) + ('\ns_mov_b32 s65, 0' if cfg.fakew else '\ns_lshl_b32 s65, s62, 15'), 's_add_u32 s65, s65, s54\ns_mov_b32 m0, s51']
                else: post += [xload(2) + '\ns_lshr_b64 s[60:61], s[60:61], 4', 's_add_u32 s65, s65, 16384\ns_mov_b32 m0, s51']
                post += [wload(t) for t in range(3)] + [wload(3) + '\ns_add_u32 m0, s51, 4096'] + [wload(t) for t in range(4, 8)]
            else:
                post += [xload(2), 's_mov_b32 m0, s51'] + [oload(t) for t in range(3)] + [oload(3) + '\ns_add_u32 m0, s51, 4096\ns_add_u32 s66, s66, 32768']
                post += [oload(t) for t in range(4, 7)] + [oload(7) + f'\ns_add_u32 s66, s66, {262144 - 32768}']
        if rdw: post += ['s_mov_b32 s51, s50\ns_add_u32 s50, s50, 32768', 's_cmp_eq_u32 s50, s57\ns_cselect_b32 s50, s56, s50']
        post += [''] * (2 * len(units) - len(post))
        ntr = [3, 3, 2, 2, 2, 2, 2, 0]; k = 0
        for i in units:
            U = (8 * ph + i - 2) % 32; s, u = U >> 4, U & 15; j, kk = u >> 1, u & 1
            if i < maxT:
                d = DD + 16 * (j & 3); w = W + 4 * (U % 8)
                e(f'v_mfma_f32_32x32x16_bf16 v[{d}:{d+15}], v[{F+4*kk}:{F+4*kk+3}], a[{w}:{w+3}], ' + ('0' if kk == 0 else f'v[{d}:{d+15}]'))
            if rdw:
                for _ in range(ntr[i]):
                    f, h = k >> 1, k & 1; r = W + 4 * f + 2 * h; k += 1
                    e(f'ds_read_b64_tr_b16 a[{r}:{r+1}], v2 offset:{(f & 1)*16384 + h*4096 + (f >> 1)*256}')
            if i < maxC:
                P = ((U >> 2) - 1) % 8; sp, p = P >> 2, P & 3; d0 = DD + 16 * ((2 * p) & 3)
                for x in range(4):
                    bn = 4 * (U & 3) + x
                    e(f'v_cvt_pk_bf16_f32 v{B+64*sp+4*bn+p}, v{d0+bn}, v{d0+16+bn}')
            for v in range(2):
                a = A + 4 * ((2 * U + v) % 8); c = ACC + 8 * u + 4 * v; b_ = B + 64 * (1 - s) + 4 * u
                e(f'v_mfma_f32_16x16x32_bf16 a[{c}:{c+3}], a[{a}:{a+3}], v[{b_}:{b_+3}], a[{c}:{c+3}]')
                if rda:
                    a2 = A + 4 * ((2 * (U + 2) + v) % 8)
                    e(f'ds_read_b128 a[{a2}:{a2+3}], v{VX+i} offset:{((ph + 2) % 4)*12288 + v*4096}')
                e(post.pop(0))
        assert not any(post)
        if rdw: e('v_add_u32 v2, s50, v1')
        if cfg.trace: e('s_mov_b32 m0, s96\ns_add_u32 s96, s96, 1\nv_writelane_b32 v240, s98, m0')
    def loop():
        for ph in range(4):
            if ph == 2: e.label('L_phase2', keep=True)
            e('s_barrier')
            interval(ph)
            if ph % 2 == 0:
                e(f's_cmp_lg_u32 s67, 0\ns_cbranch_scc1 L_hook{ph}'); e.label(f'L_back{ph}', keep=True)
            if ph == 3: e('s_sub_u32 s42, s42, 1\ns_cmp_lg_u32 s42, 0')
            e('s_waitcnt vmcnt(11) lgkmcnt(4)')
        e('s_cbranch_scc1 L_phase0')
    n = len(e.lines); loop(); del e.lines[n:]
    e.raw('.p2align 3'); e.label('L_phase0', keep=True)
    loop()
    e('s_barrier'); interval(0, ldw='o'); e('s_waitcnt vmcnt(11) lgkmcnt(4)')
    e('s_barrier'); interval(1, ldw='o'); e('s_waitcnt vmcnt(8)')
    e('s_barrier'); interval(2, rdw=False, ldx=False, maxT=2, maxC=6)
    interval(3, rdw=False, ldx=False, maxT=0, maxC=0)
    interval(0, rdw=False, ldx=False, maxT=0, maxC=0, rda=False, units=range(2))
    stamp(5)
    if cfg.trace:
        e(f's_lshl_b32 s41, s2, 2\ns_add_u32 s41, s41, s3\ns_lshl_b32 s41, s41, 8\ns_add_u32 s41, s41, {STAMP_OFF + (1 << 20)}\nv_lshlrev_b32 v21, 2, v0')
        e(f'buffer_store_dword v240, v21, {SWS}, s41 offen')
    e(f'v_lshrrev_b32 v21, 4, v0\nv_mul_u32_u24 v20, {4*983040}, v21\nv_and_b32 v21, 15, v0\nv_lshl_add_u32 v20, v21, 4, v20')
    e('s_lshl_b32 s40, s52, 1\ns_lshr_b32 s41, s3, 1\ns_add_u32 s40, s40, s41\ns_mul_i32 s40, s40, 3\ns_add_u32 s40, s40, s49\ns_mul_i32 s40, s40, 5')
    e(f's_add_u32 s40, s40, s48\ns_lshl_b32 s40, s40, 11\ns_and_b32 s41, s3, 1\ns_lshl_b32 s41, s41, 8\ns_add_u32 s40, s40, s41\ns_add_u32 s40, s40, {Y_OFF}')
    k = 0
    for hb in range(2):
        for r in range(4):
            e(f's_add_u32 s41, s40, {r*983040}')
            for pl in range(2):
                t = DD + 8 * (k % 2); o = B + 4 * k; k += 1
                for x in range(8): e(f'v_accvgpr_read_b32 v{t+x}, a{ACC+8*(8*hb+x)+4*pl+r}')
                for x in range(4): e(f'v_cvt_pk_bf16_f32 v{o+x}, v{t+2*x}, v{t+2*x+1}')
                e(f'buffer_store_dwordx4 v[{o}:{o+3}], v20, {SWS}, s41 offen offset:{hb*1024+pl*512} sc1')
    e('s_branch L_phasec')
    for ph in (0, 2):
        e.label(f'L_hook{ph}')
        e(f's_cmp_lg_u32 s3, 0\ns_cbranch_scc1 L_hook{ph}_go')
        poll(f'L_polla{ph}', 64, True, TMP + 4, 63)
        e.label(f'L_hook{ph}_go')
        e(f's_waitcnt vmcnt(11)\ns_barrier\nv_mov_b32 v3, v20\ns_mov_b32 s67, 0\ns_add_u32 m0, s53, {ph*12288}')
        stamp(4)
        for t in range(3): e(xload(t))
        e(f's_branch L_back{ph}')
    e.label('L_helper')
    if cfg.stamps: e('s_memrealtime s[80:81]\ns_memrealtime s[82:83]\ns_waitcnt lgkmcnt(0)')
    assert n0 == n1
    e('s_and_b32 s41, s15, 1\ns_lshl_b32 s41, s41, 3\ns_add_u32 s41, s41, s14\ns_lshl_b32 s41, s41, 2\ns_add_u32 s41, s41, s3')
    e('s_and_b32 s42, s41, 7\ns_lshl_b32 s42, s42, 2\ns_lshr_b32 s43, s41, 3')
    e('v_lshrrev_b32 v21, 4, v0\nv_add_u32 v21, s42, v21\nv_lshlrev_b32 v21, 20, v21\nv_and_b32 v22, 15, v0\nv_lshl_add_u32 v21, v22, 11, v21')
    nitem = (n0 - cfg.hstart) * 6 - 2 * (n0 - n2)
    for it in range(-(-nitem // 8)):
        e(f's_add_u32 s44, s43, {8*it}')
        if 8 * it + 8 > nitem: e(f's_cmp_ge_u32 s44, {nitem}\ns_cbranch_scc1 L_h1')
        e('s_mul_i32 s45, s44, 43\ns_lshr_b32 s45, s45, 8\ns_mul_i32 s46, s45, 6\ns_sub_u32 s46, s44, s46')
        e(f's_lshr_b32 s47, s46, 1\ns_mul_i32 s47, s47, {n0}\ns_add_u32 s45, s45, s47\ns_lshl_b32 s45, s45, 15')
        e(f's_and_b32 s46, s46, 1\ns_lshl_b32 s46, s46, 10\ns_add_u32 s45, s45, s46\ns_add_u32 s45, s45, {cfg.hstart*32768 + 384}')
        e(f'buffer_load_dword v{32+it}, v21, {SW}, s45 offen')
        if cfg.hsync == 'wait': e('s_waitcnt vmcnt(0)')
    e.label('L_h1')
    if cfg.wo_pf: e(f's_lshl_b32 s45, s41, 13\nv_lshlrev_b32 v21, 7, v0\nbuffer_load_dword v31, v21, {SWO}, s45 offen')
    e.label('L_h2')
    e('s_waitcnt vmcnt(0)\ns_barrier')
    stamp(5)
    for h in range(2):
        for t in range(8):
            if t % 4 == 0: e(f's_add_u32 m0, s56, {h*32768 + t*1024}')
            e(oload(t))
            if t % 4 == 3: e(f's_add_u32 s66, s66, {32768 if t == 3 else 262144 - 32768}')
    e.label('L_phasec')
    G, YA, CA, WO = 32, 72, 120, 0
    e('s_lshl_b32 s39, s14, 1\ns_lshr_b32 s40, s15, 4\ns_add_u32 s39, s39, s40\ns_and_b32 s40, s15, 15')
    e(f'v_and_b32 v8, 31, v0\ns_lshl_b32 s41, s3, 5\ns_add_u32 s41, s41, 32\nv_add_u32 v8, s41, v8\nv_cvt_f32_u32 v8, v8\nv_mul_f32 v8, {f32(1/320)}, v8')
    e('v_lshrrev_b32 v9, 5, v0\nv_cvt_f32_u32 v9, v9\nv_mul_f32 v9, 0x3e800000, v9')
    twiddles(e, G, 8, 9, [2 * j + 1 for j in range(8)], 184)
    e('v_lshrrev_b32 v21, 1, v0\nv_lshlrev_b32 v21, 12, v21\nv_and_b32 v22, 1, v0\nv_lshl_add_u32 v21, v22, 8, v21')
    e('s_lshr_b32 s41, s52, 3\ns_mul_i32 s41, s41, 15\ns_mul_i32 s42, s49, 5\ns_add_u32 s41, s41, s42\ns_add_u32 s41, s41, s48\ns_lshl_b32 s41, s41, 3')
    e(f's_and_b32 s42, s52, 7\ns_lshl_b32 s42, s42, 9\ns_add_u32 s41, s41, s42\ns_add_u32 s41, s41, {FB_OFF}')
    e(f's_lshl_b32 s43, s39, 4\ns_add_u32 s43, s43, s40\ns_lshl_b32 s42, s43, 8\ns_add_u32 s42, s42, {FB_OFF}')
    e('s_and_b32 s44, s3, 1\ns_lshr_b32 s45, s3, 1')
    e('s_lshl_b32 s46, s39, 5\ns_add_u32 s46, s46, s40\ns_lshl_b32 s47, s44, 4\ns_add_u32 s46, s46, s47')
    e(f's_mul_i32 s46, s46, 30\ns_add_u32 s46, s46, s45\ns_lshl_b32 s46, s46, 10\ns_add_u32 s46, s46, {Y_OFF}')
    e('v_lshlrev_b32 v2, 4, v0\nv_add_u32 v3, 0x10000, v2\ns_lshl_b32 s47, s3, 10\ns_add_u32 s47, s47, 0x10000')
    e('v_lshrrev_b32 v7, 5, v0\nv_bfe_u32 v8, v0, 2, 2\nv_lshl_add_u32 v7, v7, 2, v8\nv_lshlrev_b32 v4, 7, v7')
    e('v_bfe_u32 v7, v0, 4, 1\nv_and_b32 v8, 1, v0\nv_lshl_add_u32 v7, v7, 1, v8\nv_bfe_u32 v8, v0, 3, 1\nv_xor_b32 v8, s44, v8\nv_lshl_add_u32 v7, v8, 2, v7')
    e('v_lshl_add_u32 v4, v7, 4, v4\nv_bfe_u32 v7, v0, 1, 1\nv_lshl_add_u32 v4, v7, 3, v4')
    e('s_waitcnt vmcnt(0)\ns_barrier')
    stamp(6)
    e('s_cmp_lg_u32 s3, 0\ns_cbranch_scc1 L_c1')
    e('s_cmp_eq_u32 s59, 1\ns_cbranch_scc1 L_c0')
    publish(32, 21, 41)
    e.label('L_c0')
    poll('L_pollb', 30, False, TMP + 4, 42)
    e.label('L_c1')
    e('s_barrier')
    stamp(7)
    for i in range(15):
        e(f's_add_u32 m0, s47, {i*4096}\ns_add_u32 s41, s46, {i*2048}\nbuffer_load_dwordx4 v2, {SWS}, s41 offen sc1 lds')
    for ks in range(32):
        for h in range(2): e(f'ds_read_b64_tr_b16 a[{WO+4*ks+2*h}:{WO+4*ks+2*h+1}], v4 offset:{ks*2048+h*1024}')
    e(f's_lshl_b32 s50, s39, 2\ns_add_u32 s50, s50, s3\ns_lshl_b32 s50, s50, 5\ns_lshl_b32 s41, s40, 1\ns_add_u32 s50, s50, s41\ns_lshl_b32 s50, s50, 10\ns_add_u32 s50, s50, {Z_OFF}')
    e('s_waitcnt lgkmcnt(0)')
    for ch in range(5):
        e(f's_waitcnt vmcnt({12-3*ch})\ns_barrier')
        for x in range(12): e(f'ds_read_b128 v[{YA+4*x}:{YA+4*x+3}], v3 offset:{(12*ch+x)*1024}')
        for x in range(12):
            ph = 12 * ch + x; m, side = ph >> 1, ph & 1; kb = m % 10; c = CA + 16 * side
            e(f'v_mfma_f32_32x32x16_bf16 v[{c}:{c+15}], v[{YA+4*x}:{YA+4*x+3}], v[{G+4*kb}:{G+4*kb+3}], ' + ('0' if m == 0 else f'v[{c}:{c+15}]'))
    stamp(8)
    L2E = 1.4426950408889634
    f_, g_, t_ = CA, CA + 16, YA
    for i in range(16): e(f'v_mul_f32 v{t_+i}, {f32(2*L2E/80)}, v{f_+i}\nv_mul_f32 v{g_+i}, {f32(-L2E/80)}, v{g_+i}')
    for i in range(16): e(f'v_exp_f32 v{t_+i}, v{t_+i}\nv_exp_f32 v{g_+i}, v{g_+i}')
    for i in range(16): e(f'v_add_f32 v{t_+i}, 1.0, v{t_+i}\nv_add_f32 v{g_+i}, 1.0, v{g_+i}')
    for i in range(16): e(f'v_rcp_f32 v{t_+i}, v{t_+i}\nv_rcp_f32 v{g_+i}, v{g_+i}')
    for i in range(16): e(f'v_fma_f32 v{t_+i}, v{t_+i}, -2.0, 1.0')
    for i in range(16): e(f'v_mul_f32 v{f_+i}, v{t_+i}, v{g_+i}')
    for i in range(8): e(f'v_cvt_pk_bf16_f32 v{12+i}, v{f_+2*i}, v{f_+2*i+1}')
    e(f'buffer_store_dwordx4 v[12:15], v2, {SWS}, s50 offen sc1\nbuffer_store_dwordx4 v[16:19], v2, {SWS}, s50 offen offset:1024 sc1')
    e(f'v_lshlrev_b32 v21, 7, v0\ns_lshl_b32 s41, s39, 11\ns_lshl_b32 s42, s40, 3\ns_add_u32 s41, s41, s42\ns_add_u32 s41, s41, {FC_OFF}')
    e(f's_lshl_b32 s42, s43, 7\ns_add_u32 s42, s42, {FC_OFF}')
    e('s_lshl_b32 s46, s39, 1\ns_lshr_b32 s47, s40, 3\ns_add_u32 s46, s46, s47\ns_and_b32 s47, s40, 7')
    e(f's_lshl_b32 s50, s46, 16\ns_lshl_b32 s51, s45, 15\ns_lshl_b32 s53, s44, 12\ns_add_u32 s51, s51, s53\ns_add_u32 s50, s50, s51\ns_add_u32 s50, s50, {Z_OFF}')
    e('s_add_u32 s51, s51, 0x10000\ns_lshl_b32 s53, s45, 15\nv_add_u32 v5, s53, v3')
    e('s_lshr_b32 s54, s46, 4\ns_bfe_u32 s55, s46, 0x10003\ns_and_b32 s56, s46, 7\ns_lshl_b32 s56, s56, 6\ns_lshl_b32 s57, s45, 5\ns_add_u32 s56, s56, s57')
    e('s_mul_i32 s54, s54, 1000\ns_add_u32 s54, s54, s55\ns_lshl_b32 s54, s54, 10\ns_lshl_b32 s55, s47, 7\ns_add_u32 s54, s54, s55\ns_lshl_b32 s55, s44, 6\ns_add_u32 s54, s54, s55')
    e('v_and_b32 v7, 31, v0\nv_add_u32 v7, s56, v7\nv_lshrrev_b32 v8, 5, v0\nv_lshlrev_b32 v8, 4, v8\nv_add_u32 v8, s54, v8\nv_lshl_add_u32 v6, v7, 11, v8')
    e(f'v_mov_b32 v9, {BIG}\ns_movk_i32 s55, 500\nv_cmp_gt_u32 vcc, s55, v7\nv_cndmask_b32 v6, v9, v6, vcc')
    e('s_waitcnt vmcnt(0)\ns_barrier')
    stamp(9)
    e('s_cmp_lg_u32 s3, 0\ns_cbranch_scc1 L_d1')
    publish(16, 21, 41)
    poll('L_pollc', 16, False, TMP + 4, 42)
    e.label('L_d1')
    e('s_barrier')
    stamp(10)
    for ch in range(4):
        e(f's_add_u32 m0, s51, {8*ch*1024}\ns_add_u32 s41, s50, {8*ch*1024}')
        for x in range(4): e(f'buffer_load_dwordx4 v2, {SWS}, s41 offen offset:{x*1024} sc1 lds')
    ZB, OA = 32, 96
    for ch in range(4):
        e(f's_waitcnt vmcnt({12-4*ch})\ns_barrier')
        zb = ZB + 32 * (ch & 1)
        for x in range(8): e(f'ds_read_b128 v[{zb+4*x}:{zb+4*x+3}], v5 offset:{(8*ch+x)*1024}')
        for x in range(8):
            ks = 8 * ch + x
            e(f'v_mfma_f32_32x32x16_bf16 v[{OA}:{OA+15}], a[{WO+4*ks}:{WO+4*ks+3}], v[{zb+4*x}:{zb+4*x+3}], ' + ('0' if ks == 0 else f'v[{OA}:{OA+15}]'))
    for i in range(8): e(f'v_cvt_pk_bf16_f32 v{12+i}, v{OA+2*i}, v{OA+2*i+1}')
    e(f'buffer_store_dwordx4 v[12:15], v6, {SOUT}, 0 offen {cfg.out_aux}\nbuffer_store_dwordx4 v[16:19], v6, {SOUT}, 0 offen offset:32 {cfg.out_aux}')
    e('s_or_b32 s41, s2, s3\ns_cmp_lg_u32 s41, 0\ns_cbranch_scc1 L_fin')
    e(f'v_mov_b32 v21, 0\ns_mov_b32 s41, {EP_OFF}')
    publish(1, 21, 41)
    e.label('L_fin')
    if cfg.stamps:
        e('s_waitcnt vmcnt(0)\ns_memrealtime s[94:95]\ns_waitcnt lgkmcnt(0)')
        for i in range(12): e(f'v_mov_b32 v{8+i}, s{72+2*i}')
        e(f's_lshl_b32 s41, s2, 2\ns_add_u32 s41, s41, s3\ns_lshl_b32 s41, s41, 6\ns_add_u32 s41, s41, {STAMP_OFF}\nv_mov_b32 v6, 0')
        for i in range(3): e(f'buffer_store_dwordx4 v[{8+4*i}:{11+4*i}], v6, {SWS}, s41 offen offset:{16*i}')
    e.label('L_end'); e('s_endpgm')
    if cfg.diag:
        k, mult, red = cfg.diag
        e.raw('.globl diag_kernel\n.p2align 8\n.type diag_kernel,@function'); e.label('diag_kernel')
        e('s_cmp_ge_u32 s2, 1\ns_cbranch_scc1 L_dend\ns_memrealtime s[20:21]\ns_load_dwordx2 s[12:13], s[0:1], 40\ns_waitcnt lgkmcnt(0)')
        srd(e, 24, 12, WSB)
        e(f'v_min_u32 v0, 59, v0\nv_lshlrev_b32 v1, 8, v0\nv_add_u32 v1, {STAMP_OFF}, v1')
        for i in range(4):
            e(f's_mov_b32 s30, {i*60*256}\nbuffer_load_dword v{4+i}, v1, {SWS}, s30 offen sc1\nbuffer_load_dword v{8+i}, v1, {SWS}, s30 offen offset:{4*k} sc1')
        e('s_waitcnt vmcnt(0)')
        for i in range(1, 4): e(f'v_min_u32 v4, v4, v{4+i}\nv_{red}_u32 v8, v8, v{8+i}')
        e('s_nop 1\nv_readlane_b32 s22, v4, 0\nv_readlane_b32 s23, v8, 0')
        for l in range(1, 60): e(f'v_readlane_b32 s30, v4, {l}\nv_readlane_b32 s31, v8, {l}\ns_nop 1\ns_min_u32 s22, s22, s30\ns_{red}_u32 s23, s23, s31')
        e(f's_sub_u32 s22, s23, s22\ns_min_u32 s22, s22, 20000\ns_mul_i32 s22, s22, {mult}\ns_add_u32 s22, s22, 300')
        e.label('L_diag')
        e('s_memrealtime s[28:29]\ns_waitcnt lgkmcnt(0)\ns_sub_u32 s28, s28, s20\ns_cmp_lt_u32 s28, s22\ns_cbranch_scc1 L_diag')
        e.label('L_dend'); e('s_endpgm')
        out = f'; @launch kernel={NAME} grid=(256,1,1) block=(256,1,1) lds=159744\n; @launch kernel=diag_kernel grid=(1,1,1) block=(64,1,1) lds=0\n'
        out += '.amdgcn_target "amdgcn-amd-amdhsa--gfx950"\n.text\n' + e.text()
        out += '.section .rodata,"a"\n' + kernel_desc(NAME, 448, sgpr=100, accum=256) + '\n' + kernel_desc('diag_kernel', 16) + '\n'
        open(path, 'w').write(out); return
    out = '; @launch grid=(256,1,1) block=(256,1,1) lds=159744\n.amdgcn_target "amdgcn-amd-amdhsa--gfx950"\n.text\n' + e.text()
    out += '.section .rodata,"a"\n' + kernel_desc(NAME, 448, sgpr=100, accum=256) + '\n'
    open(path, 'w').write(out)

if __name__ == '__main__':
    kw = {}
    for a in sys.argv[2:]:
        k, v = a.split('=', 1); kw[k] = eval(v)
    generate(sys.argv[1], Cfg(**kw))
```

```python
import sys, struct
from emit import Emit, kernel_desc

NAME = 'standalone__autoregressive_conv_wavenet__speech_kernel'
XB, WB, WOB, OB, WSB = 2048000, 31 * 512 * 1024 * 2, 512 * 512 * 2, 2048000, 256 << 20
XF_OFF, Y_OFF, Z_OFF = 0, 4 << 20, 24 << 20
FA_OFF, FB_OFF, FC_OFF, EP_OFF = 28 << 20, (28 << 20) + 0x40000, (28 << 20) + 0x20000, (28 << 20) + 0x30000
STAMP_OFF = 128 << 20
BIG = 0x7ff00000
SX, SW, SWS, SWO, SOUT = 's[16:19]', 's[20:23]', 's[24:27]', 's[28:31]', 's[32:35]'
TAG = 36
SPIN = 1 << 14
def f32(x): return '0x%08x' % struct.unpack('<I', struct.pack('<f', x))[0]

class Cfg:
    stamps = False
    splits = (11, 11, 10)
    order = None
    batches = ('early', 'pre', 'post', 'post')
    leaders = (4, 0, 1, 2, 3)
    wo_pf = 1
    hsync = 'none'
    slownat = 0
    hstart = 3
    slowpre = 0
    lead = 1
    x_aux = 'nt'
    fakew = 0
    vmpat = ('a', 'Tb', 'a', 'a', 'Tb', 'a', 'Tb', 'a')
    skip31 = 1
    xf_aux = 'sc1'
    ylin = 0
    y_aux = 'sc1'
    tlb = 0
    fbmode = 'push'
    fwarm = 1
    awarm = 1
    nopub = 0
    psleep = 0
    remap = 0
    ymode = 0
    trace = 0
    fakex = 0
    drop = ()
    age = 14
    cyc = None
    probe = 'twid'
    out_aux = 'nt'
    yorder = (2, 0, 1)
    codepf = 4
    diag = None
    helper = None
    def __init__(self, **kw): self.__dict__.update(kw)

def step_order(cfg, g, slow, S):
    o = [g & 1]
    sched = {} if slow else {x: (cfg.leaders[(x - 2) % 5], cfg.lead + x - 2) for x in range(2, S)}
    for p in range(1, S):
        mine = [x for x, (lg, lp) in sched.items() if lg == g and lp <= p and x not in o]
        o.append(mine[0] if mine else min(y for y in range(S) if y not in o))
    return o

def srd(e, d, base, nbytes):
    e(f's_mov_b32 s{d}, s{base}\ns_mov_b32 s{d+1}, s{base+1}\ns_mov_b32 s{d+2}, {nbytes}\ns_mov_b32 s{d+3}, 0x00020000')

def twiddles(e, dst, mul, base, c0, t, stride=16, nblk=10):
    e(f'v_mul_f32 v{t+24}, {f32(stride)}, v{mul}\nv_cos_f32 v{t+24}, v{t+24}')
    for b in range(2):
        for j in range(8): e(f'v_fmamk_f32 v{t+8*b+j}, v{mul}, {f32(c0[j] + stride * b)}, v{base}')
        for j in range(8): e(f'v_cos_f32 v{t+8*b+j}, v{t+8*b+j}')
    e(f'v_add_f32 v{t+24}, v{t+24}, v{t+24}')
    for b in range(nblk):
        r, p, q = t + 8 * (b % 3), t + 8 * ((b - 1) % 3), t + 8 * ((b - 2) % 3)
        if b >= 2:
            for j in range(0, 8, 2):
                e(f'v_pk_fma_f32 v[{r+j}:{r+j+1}], v[{t+24}:{t+25}], v[{p+j}:{p+j+1}], v[{q+j}:{q+j+1}] op_sel_hi:[0,1,1] neg_lo:[0,0,1] neg_hi:[0,0,1]')
        for j in range(0, 8, 2): e(f'v_cvt_pk_bf16_f32 v{dst+4*b+j//2}, v{r+j}, v{r+j+1}')

def generate(path, cfg):
    e = Emit(); e.age = cfg.age
    def stamp(k):
        if cfg.stamps and cfg.cyc and k in cfg.cyc: e(f's_memtime s[{96+2*cfg.cyc.index(k)}:{97+2*cfg.cyc.index(k)}]')
        if cfg.stamps: e(f's_memrealtime s[{72+2*k}:{73+2*k}]\ns_waitcnt lgkmcnt(0)')
    def publish(lanes, voff, soff):
        e(f'v_mov_b32 v222, s{TAG}\nv_mov_b32 v223, s{TAG+1}\ns_mov_b32 exec_lo, {(1 << lanes) - 1}\ns_mov_b32 exec_hi, 0')
        e(f'buffer_store_dwordx2 v[222:223], v{voff}, {SWS}, s{soff} offen sc1\ns_mov_b64 exec, -1')
    def poll(lbl, lanes, wide, tmp, soff):
        e(f'v_lshlrev_b32 v{tmp+4}, {4 if wide else 3}, v0\ns_mov_b32 s38, 0')
        if lanes < 64: e(f's_mov_b32 exec_lo, {(1 << lanes) - 1}\ns_mov_b32 exec_hi, 0')
        e.label(lbl)
        e(f'buffer_load_dwordx{4 if wide else 2} v[{tmp}:{tmp+(3 if wide else 1)}], v{tmp+4}, {SWS}, s{soff} offen sc1')
        e(f's_add_u32 s38, s38, 1\ns_waitcnt vmcnt(0)\nv_cmp_ne_u64 vcc, s[{TAG}:{TAG+1}], v[{tmp}:{tmp+1}]')
        if wide: e(f'v_cmp_ne_u64 s[70:71], s[{TAG}:{TAG+1}], v[{tmp+2}:{tmp+3}]\ns_nop 1\ns_or_b64 vcc, vcc, s[70:71]')
        e(f's_cmp_ge_u32 s38, {SPIN}\ns_cbranch_scc1 {lbl}_out\ns_cbranch_vccnz {lbl}')
        e.label(lbl + '_out')
        e('s_mov_b64 exec, -1')

    XBASE, XLDS = 3 * 32768, 147456
    n0, n1, n2 = cfg.splits
    VX, VW, F, DD, B, TMP = 4, 12, 24, 32, 96, 224
    ACC, W, A = 0, 128, 160
    e.raw(f'.globl {NAME}\n.p2align 8\n.type {NAME},@function'); e.label(NAME)
    e('s_cmp_ge_u32 s2, 256\ns_cbranch_scc1 L_end')
    if cfg.stamps: e('s_memrealtime s[72:73]')
    if cfg.cyc: e('s_memtime s[96:97]\ns_memtime s[98:99]')
    e('s_load_dwordx4 s[4:7], s[0:1], 0\ns_load_dwordx4 s[8:11], s[0:1], 16\ns_load_dwordx2 s[12:13], s[0:1], 40')
    CP = 250
    touch = f'global_load_dword v{CP+2}, v[{CP}:{CP+1}], off'
    e(f's_lshr_b32 s3, s2, 3\nv_lshl_add_u32 v25, v0, 5, s3\ns_getpc_b64 s[14:15]\nv_min_u32 v25, (L_end-{NAME})/128, v25\nv_lshlrev_b32 v25, 7, v25')
    e(f's_and_b32 s14, s14, 0xffffff00\nv_mov_b32 v{CP+1}, s15\nv_add_co_u32 v{CP}, vcc, s14, v25\ns_nop 1\nv_addc_co_u32 v{CP+1}, vcc, 0, v{CP+1}, vcc\n{touch}')
    e('v_lshrrev_b32 v1, 6, v0\nv_and_b32 v0, 63, v0\nv_readfirstlane_b32 s3, v1')
    e('s_and_b32 s14, s2, 7\ns_lshr_b32 s15, s2, 3')
    e('s_lshr_b32 s39, s15, 1\ns_and_b32 s40, s15, 1\ns_lshl_b32 s41, s14, 1\ns_add_u32 s40, s40, s41')
    e('s_lshr_b32 s41, s39, 3\ns_bfe_u32 s42, s39, 0x10002\ns_and_b32 s43, s39, 3')
    e('s_lshl_b32 s43, s43, 7\ns_sub_u32 s43, s43, 32')
    e('s_mul_i32 s41, s41, 1000\ns_add_u32 s41, s41, s42\ns_lshl_b32 s41, s41, 10\ns_lshl_b32 s42, s40, 6\ns_add_u32 s41, s41, s42')
    e('v_lshrrev_b32 v2, 2, v0\ns_lshl_b32 s42, s3, 4\ns_add_u32 s42, s42, s43\nv_add_u32 v2, s42, v2')
    e('v_and_b32 v3, 3, v0\nv_lshlrev_b32 v3, 4, v3\nv_add_u32 v3, s41, v3')
    e(f'v_mov_b32 v7, {BIG}\ns_movk_i32 s41, 500\ns_cmp_lt_u32 s3, 2\ns_cselect_b32 s42, s41, 0')
    for m in range(3):
        if m: e('v_add_u32 v2, 64, v2')
        e(f'v_lshl_add_u32 v{4+m}, v2, 11, v3\nv_cmp_gt_u32 vcc, s{42 if m == 2 else 41}, v2\nv_cndmask_b32 v{4+m}, v7, v{4+m}, vcc')
    e('s_mul_i32 s41, s15, 52\ns_lshr_b32 s41, s41, 8\ns_mul_i32 s48, s41, 5\ns_sub_u32 s48, s15, s48')
    if cfg.remap:
        e('s_lshl_b32 s42, s14, 2\ns_lshl_b32 s43, s14, 1\ns_add_u32 s43, s43, 28\ns_cmp_lt_u32 s41, 4\ns_cselect_b32 s42, s42, s43\ns_add_u32 s42, s42, s41')
        e('s_min_u32 s43, s14, 5\ns_lshl_b32 s43, s43, 3\ns_add_u32 s43, s43, 3')
        e('s_cmp_ge_u32 s15, 30\ns_cselect_b32 s59, 1, 0\ns_cselect_b32 s42, s43, s42\ns_lshr_b32 s49, s42, 4\ns_and_b32 s52, s42, 15')
    else:
        e('s_cmp_ge_u32 s15, 30\ns_cselect_b32 s59, 1, 0\ns_min_u32 s41, s41, 5')
        e('s_mul_i32 s43, s14, 6\ns_add_u32 s42, s43, s41\ns_add_u32 s41, s43, 4\ns_and_b32 s41, s41, 0x38\ns_add_u32 s41, s41, 3')
        e('s_cmp_ge_u32 s15, 30\ns_cselect_b32 s42, s41, s42\ns_lshr_b32 s49, s42, 4\ns_and_b32 s52, s42, 15')
    e(f's_mov_b32 s43, 0\ns_mov_b32 s58, {n0}')
    e(f's_cmp_eq_u32 s49, 1\ns_cselect_b32 s43, {n0}, s43\ns_cselect_b32 s58, {n1}, s58')
    e(f's_cmp_eq_u32 s49, 2\ns_cselect_b32 s43, {n0+n1}, s43\ns_cselect_b32 s58, {n2}, s58')
    e(f's_lshl_b32 s41, s3, 10\ns_add_u32 s41, s41, {XLDS}')
    e('s_waitcnt lgkmcnt(0)')
    if cfg.probe == 'karg': stamp(1)
    srd(e, 16, 4, XB)
    for m in range(3):
        e(f's_add_u32 m0, s41, {m*4096}')
        if m == 0: e(f's_add_u32 s44, s12, {EP_OFF}')
        if m == 1: e('s_nop 0')
        if m == 2: e('s_nop 0')
        e(f'buffer_load_dwordx4 v{4+m}, {SX}, 0 offen {cfg.x_aux} lds')
        if m == 0: e(f's_addc_u32 s45, s13, 0\ns_load_dwordx2 s[46:47], s[44:45], 0')
    srd(e, 20, 6, WB); srd(e, 24, 12, WSB); srd(e, 28, 8, WOB); srd(e, 32, 10, OB)
    if cfg.awarm: e(f's_lshl_b32 s41, s2, 6\ns_add_u32 s41, s41, {FA_OFF}\nbuffer_load_dword v253, off, {SWS}, s41')
    e('s_add_u32 s41, s48, 2\ns_cmp_eq_u32 s48, 4\ns_cselect_b32 s41, 1, s41\ns_add_u32 s42, s41, 6\ns_cmp_lt_u32 s42, s58')
    e('s_cselect_b32 s60, 0x100001, 1\ns_mov_b32 s61, 0\ns_lshl_b32 s41, s41, 2\ns_lshl_b64 s[60:61], s[60:61], s41\ns_and_b32 s41, s48, 1\ns_or_b32 s60, s60, s41')
    e('s_lshl_b64 s[68:69], s[60:61], 4\ns_add_u32 s60, s60, 0x76543210\ns_addc_u32 s61, s61, 0xa98\ns_sub_u32 s60, s60, s68\ns_subb_u32 s61, s61, s69')
    e('s_cmp_eq_u32 s59, 1\ns_cselect_b32 s60, 2, s60\ns_cselect_b32 s41, 0, 1\ns_lshr_b32 s68, s48, s41\ns_and_b32 s68, s68, 1')
    e('s_lshl_b32 s54, s43, 15\ns_lshl_b32 s41, s52, 7\ns_add_u32 s54, s54, s41')
    e(f's_mul_i32 s55, s43, 122880\ns_mul_i32 s41, s48, 24576\ns_add_u32 s55, s55, s41')
    e(f's_lshr_b32 s63, s43, 1\ns_min_u32 s63, s63, 8\ns_lshl_b32 s63, s63, 7\ns_lshl_b32 s41, s14, 11\ns_add_u32 s63, s63, s41\ns_add_u32 s63, s63, {FA_OFF}')
    e('v_bfe_u32 v21, v0, 3, 1\nv_lshrrev_b32 v22, 4, v0\nv_lshl_add_u32 v21, v21, 2, v22\nv_lshlrev_b32 v21, 11, v21')
    e('s_lshl_b32 s41, s3, 23\nv_add_u32 v21, s41, v21\nv_and_b32 v22, 7, v0')
    for t in range(4):
        e(f'v_xor_b32 v23, {2*t}, v22\nv_lshl_add_u32 v23, v23, 4, v21')
        e(f'v_add_u32 v{VW+t}, {(t << 20) - t * 1024}, v23\nv_add_u32 v{VW+4+t}, {((t + 4) << 20) - t * 1024}, v23')
    e('s_lshl_b32 s56, s3, 13\ns_add_u32 s57, s56, 98304')
    for i, S in enumerate(sorted(set(cfg.splits))):
        r = (2 - (2 * S - 1)) % 3
        if i == 0: e(f's_mov_b32 s50, {r*32768}\ns_mov_b32 s64, {(r+1)%3*32768}\ns_mov_b32 s51, {(r+2)%3*32768}')
        else: e(f's_cmp_eq_u32 s58, {S}\ns_cselect_b32 s50, {r*32768}, s50\ns_cselect_b32 s64, {(r+1)%3*32768}, s64\ns_cselect_b32 s51, {(r+2)%3*32768}, s51')
    e('s_add_u32 s50, s50, s56\ns_add_u32 s64, s64, s56\ns_add_u32 s51, s51, s56')
    e('s_and_b32 s62, s60, 15\ns_lshr_b64 s[60:61], s[60:61], 4\ns_lshl_b32 s65, s62, 15\ns_add_u32 s65, s65, s54')
    e('s_cmp_eq_u32 s68, 1\ns_cselect_b32 s69, s64, s50\ns_cselect_b32 s64, s50, s64\ns_lshl_b32 s68, s68, 14\ns_add_u32 s65, s65, s68')
    wload = lambda t: f'buffer_load_dwordx4 v{VW+t}, {SW}, s65 offen offset:{(t&3)*1024} lds'
    xload = lambda t, v=3: f'buffer_load_dwordx4 v{v}, {SWS}, s45 offen offset:{t*1024} {cfg.xf_aux} lds'
    def batch(where):
        n = 0
        for i, p in enumerate(cfg.batches):
            if p != where: continue
            if i == 2: e('s_xor_b32 s65, s65, 16384')
            e(f's_add_u32 m0, s{64 if i >> 1 else 69}, {(i & 1) * 4096}')
            for t in range(4): e(wload(4 * (i & 1) + t))
            n += 4
        return n
    nearly = batch('early') + cfg.awarm
    F0, F1, AB, A1, D0, D1, T0 = 32, 72, 92, 132, 152, 168, 184
    e(f's_lshl_b32 s41, s3, 4\nv_and_b32 v11, 15, v0\nv_add_u32 v8, s41, v11\nv_lshl_add_u32 v8, v8, 1, 1\nv_cvt_f32_u32 v8, v8\nv_mul_f32 v8, {f32(1/320)}, v8')
    e('v_bfe_u32 v9, v0, 4, 1\nv_cvt_f32_u32 v9, v9\nv_mul_f32 v9, 0x3e800000, v9')
    e('v_lshrrev_b32 v10, 5, v0\nv_lshlrev_b32 v10, 3, v10\nv_cvt_f32_u32 v10, v10\nv_fma_f32 v9, v8, v10, v9')
    twiddles(e, F0, 8, 9, list(range(8)), T0)
    split_pre = not cfg.slowpre and cfg.batches[1] in ('pre', 'pre2')
    def pre(where):
        n = 0
        if not split_pre: n = batch(where)
        elif cfg.batches[1] == where:
            e('s_and_b32 s41, s52, 7\ns_cmp_eq_u32 s41, 3\ns_cbranch_scc1 L_nopre')
            batch(where)
            e.label('L_nopre')
        return n
    nearly += pre('pre')
    e(f'v_cvt_f32_u32 v8, v11\nv_mov_b32 v9, {f32(129/320)}\nv_fmac_f32 v9, {f32(2/320)}, v8\ns_bitcmp1_b32 s3, 0\ns_cselect_b32 s41, 0x3e800000, 0')
    e('v_lshrrev_b32 v10, 4, v0\nv_lshlrev_b32 v10, 3, v10\nv_cvt_f32_u32 v10, v10\nv_fma_f32 v8, v9, v10, s41')
    twiddles(e, F1, 9, 8, list(range(8)), T0, 32, 5)
    nearly += pre('pre2')
    e('v_bfe_u32 v11, v0, 2, 2\nv_lshlrev_b32 v11, 6, v11\nv_and_b32 v4, 3, v0\nv_lshl_add_u32 v11, v4, 3, v11')
    e(f'v_lshrrev_b32 v4, 5, v0\nv_lshl_add_u32 v10, v4, 9, v11\nv_bfe_u32 v6, v0, 4, 1\nv_lshl_add_u32 v10, v6, 5, v10\nv_add_u32 v10, {XLDS}, v10')
    e(f's_lshr_b32 s44, s3, 1\ns_lshl_b32 s41, s44, 5\ns_add_u32 s41, s41, {XLDS}\nv_lshrrev_b32 v5, 4, v0\nv_lshl_add_u32 v5, v5, 9, v11\nv_add_u32 v5, s41, v5')
    e('v_bfe_u32 v8, v0, 3, 1\nv_mul_u32_u24 v8, 12288, v8\ns_lshr_b32 s41, s39, 1\nv_and_b32 v11, 7, v0\nv_xor_b32 v11, s41, v11\nv_lshl_add_u32 v11, v11, 4, v8')
    e('v_lshl_add_u32 v9, v4, 11, v11\nv_cmp_eq_u32 vcc, 1, v6\nv_lshl_add_u32 v11, v6, 11, v11\nv_add_u32 v6, 1, v6\nv_lshl_add_u32 v8, v6, 12, v9\nv_cndmask_b32 v9, v7, v9, vcc')
    e(f's_bitcmp1_b32 s3, 0\ns_cselect_b32 s41, 0, {BIG}\ns_cselect_b32 s42, 2, 1\ns_lshl_b32 s42, s42, 12\nv_mov_b32 v6, s42\nv_mov_b32 v2, s41')
    e('v_cmp_eq_u32 vcc, 1, v4\nv_cndmask_b32 v6, v6, v2, vcc\nv_add_u32 v11, v11, v6')
    e(f's_mul_i32 s41, s40, {2*122880}\ns_lshl_b32 s42, s39, 7\ns_add_u32 s41, s41, s42\ns_mul_i32 s44, s44, 122880\ns_add_u32 s44, s44, s41\ns_add_u32 s44, s44, {4*24576}')
    e('s_mul_i32 s42, s3, 24576\ns_add_u32 s41, s41, s42\ns_add_u32 s42, s41, 122880\ns_mov_b32 s43, 0x80008000')
    if cfg.probe == 'twid': stamp(1)
    if split_pre:
        e(f's_and_b32 s45, s52, 7\ns_cmp_eq_u32 s45, 3\ns_waitcnt vmcnt({nearly + 4})\ns_cbranch_scc0 L_xok\ns_waitcnt vmcnt({nearly})'); e.label('L_xok')
        e('s_waitcnt lgkmcnt(0)\ns_barrier')
    else: e(f's_waitcnt vmcnt({nearly}) lgkmcnt(0)\ns_barrier')
    if cfg.probe == 'xin': stamp(1)
    def rd(kk):
        for h in range(2):
            if kk < 5: e(f'ds_read_b64_tr_b16 v[{A1+4*kk+2*h}:{A1+4*kk+2*h+1}], v5 offset:{kk*2048+h*256}')
            else: e(f'ds_read_b64_tr_b16 v[{AB+4*(kk-5)+2*h}:{AB+4*(kk-5)+2*h+1}], v10 offset:{(kk-5)*1024+h*256}')
    for kk in range(7): rd(kk)
    batch('mid')
    e(f's_mul_i32 s{TAG}, s46, 0x9E3779B1\ns_add_u32 s{TAG}, s{TAG}, 0x7F4A7C15\ns_mul_i32 s{TAG+1}, s47, 0x85EBCA6B\ns_add_u32 s{TAG+1}, s{TAG+1}, s{TAG}')
    for kk in range(5):
        e(f'v_mfma_f32_16x16x32_bf16 v[{D1}:{D1+3}], v[{A1+4*kk}:{A1+4*kk+3}], v[{F1+4*kk}:{F1+4*kk+3}], ' + ('0' if kk == 0 else f'v[{D1}:{D1+3}]'))
        rd(kk + 7)
    Q = TMP + 16
    quarter = [f'v_cvt_pk_bf16_f32 v{Q}, v{D1}, v{D1+1}\nv_cvt_pk_bf16_f32 v{Q+1}, v{D1+2}, v{D1+3}\nv_xor_b32 v{Q+2}, s43, v{Q}\nv_xor_b32 v{Q+3}, s43, v{Q+1}',
               f'v_permlane32_swap_b32 v{Q}, v{Q+2}\nv_permlane32_swap_b32 v{Q+1}, v{Q+3}', f'buffer_store_dwordx4 v[{Q}:{Q+3}], v11, {SWS}, s44 offen sc1']
    for kk in range(10):
        e(f'v_mfma_f32_32x32x16_bf16 v[{D0}:{D0+15}], v[{AB+4*kk}:{AB+4*kk+3}], v[{F0+4*kk}:{F0+4*kk+3}], ' + ('0' if kk == 0 else f'v[{D0}:{D0+15}]'))
        if kk < 3: rd(kk + 12)
        elif quarter: e(quarter.pop(0))
    t = TMP
    for h in range(2):
        for i in range(4): e(f'v_cvt_pk_bf16_f32 v{t+4*h+i}, v{D0+8*h+2*i}, v{D0+8*h+2*i+1}')
        e(f'buffer_store_dwordx4 v[{t+4*h}:{t+4*h+3}], v8, {SWS}, s{41+h} offen sc1')
    for h in range(2):
        for i in range(4): e(f'v_xor_b32 v{t+8+4*h+i}, s43, v{t+4*h+i}')
        e(f'buffer_store_dwordx4 v[{t+8+4*h}:{t+11+4*h}], v9, {SWS}, s{41+h} offen sc1')
    stamp(2)
    e('s_mul_i32 s41, s3, 3072\nv_lshlrev_b32 v20, 4, v0\nv_add_u32 v20, s41, v20\nv_mov_b32 v3, v7')
    e(f's_add_u32 s53, s41, {XBASE}')
    e('s_and_b32 s41, s58, 1\ns_mul_i32 s41, s41, 24576\ns_add_u32 s41, s41, s53\ns_mov_b32 s45, 0')
    for h in range(2):
        e(f's_add_u32 m0, s41, {h*12288}')
        for t in range(3): e(xload(t))
    if cfg.skip31: e('s_add_u32 m0, s51, 7168\n' + xload(0))
    nlate = batch('late')
    for i in range(4): e(f'v_mov_b32 v{F+i}, 0')
    Z = f'v[{F}:{F+3}]'
    zero = [f'a[{16*i}:{16*i+15}]' for i in range(12)] + [f'v[{DD+16*i}:{DD+16*i+15}]' for i in range(1, 12)]
    def zfill(k=1):
        for _ in range(k):
            if zero: e(f'v_mfma_f32_32x32x16_bf16 {zero.pop()}, {Z}, {Z}, 0')
    e('v_bfe_u32 v21, v0, 4, 1\nv_lshrrev_b32 v22, 5, v0\nv_sub_u32 v22, 1, v22\nv_lshlrev_b32 v22, 12, v22\nv_lshl_add_u32 v22, v21, 11, v22'); zfill()
    e(f'v_and_b32 v21, 15, v0\nv_lshl_add_u32 v22, v21, 7, v22\nv_add_u32 v22, {XBASE}, v22\nv_lshrrev_b32 v21, 1, v21'); zfill()
    for i in range(8):
        e(f'v_xor_b32 v23, {i}, v21\nv_lshl_add_u32 v{VX+i}, v23, 4, v22')
        if i % 2: zfill()
    e('v_and_b32 v21, 3, v0\nv_bfe_u32 v22, v0, 3, 2\nv_lshl_add_u32 v21, v22, 2, v21\ns_lshl_b32 s41, s48, 4\nv_add_u32 v21, s41, v21'); zfill()
    e(f'v_lshl_add_u32 v21, v21, 1, 1\nv_cvt_f32_u32 v21, v21\nv_mul_f32 v21, {f32(1/320)}, v21')
    e('v_bfe_u32 v22, v0, 2, 1\nv_cvt_f32_u32 v22, v22'); zfill()
    e('v_mul_f32 v22, 0x3e800000, v22\nv_lshrrev_b32 v23, 5, v0\nv_lshlrev_b32 v23, 3, v23\nv_cvt_f32_u32 v1, v23\nv_fma_f32 v22, v21, v1, v22'); zfill()
    for i, c in enumerate([16 * kk + j for kk in range(2) for j in range(8)]):
        e(f'v_fmamk_f32 v{DD+i}, v21, {f32(c)}, v22')
        if i % 4 == 3: zfill()
    for i in range(16):
        e(f'v_cos_f32 v{DD+i}, v{DD+i}')
        if i % 3 == 2: zfill()
    e('v_bfe_u32 v21, v0, 2, 2\nv_add_u32 v23, v23, v21\nv_lshlrev_b32 v1, 10, v23\nv_xor_b32 v21, s3, v21\nv_lshl_add_u32 v1, v21, 5, v1'); zfill()
    e('v_bfe_u32 v21, v0, 4, 1\nv_lshl_add_u32 v1, v21, 7, v1\nv_and_b32 v22, 3, v0\nv_lshl_add_u32 v1, v22, 3, v1\nv_subrev_u32 v1, s56, v1\nv_add_u32 v2, s50, v1'); zfill(24)
    for i in range(8): e(f'v_cvt_pk_bf16_f32 v{F+i}, v{DD+2*i}, v{DD+2*i+1}')
    for i in range(8): e(f'v_mov_b64 v[{DD+2*i}:{DD+2*i+1}], 0')
    e(f's_lshl_b32 s41, s40, 4\ns_add_u32 s41, s41, s39\ns_lshl_b32 s41, s41, 3\ns_add_u32 s41, s41, {FA_OFF}\nv_lshlrev_b32 v21, 11, v0')
    if cfg.probe == 'setup': stamp(1)
    e(f's_waitcnt vmcnt({nlate})\ns_barrier')
    e('s_cmp_lg_u32 s3, 1\ns_cbranch_scc1 L_a4')
    e(f'v_mov_b32 v22, s{TAG}\nv_mov_b32 v23, s{TAG+1}\ns_mov_b64 exec, 0xff\nbuffer_store_dwordx2 v[22:23], v21, {SWS}, s41 offen sc1\ns_mov_b64 exec, -1')
    e.label('L_a4')
    stamp(3)
    e('v_lshrrev_b32 v21, 3, v0\nv_bfe_u32 v22, v21, 1, 1\nv_lshlrev_b32 v22, 2, v22\nv_and_b32 v23, 7, v0\nv_xor_b32 v22, v22, v23')
    e(f'v_lshlrev_b32 v21, 10, v21\nv_lshl_add_u32 v{TMP}, v22, 4, v21')
    for t in range(1, 4): e(f'v_add_u32 v{TMP+t}, {t*7168}, v{TMP}')
    e('s_and_b32 s66, s15, 7\ns_lshl_b32 s66, s66, 7\ns_lshl_b32 s41, s3, 16\ns_add_u32 s66, s66, s41')
    oload = lambda t: f'buffer_load_dwordx4 v{TMP+(t&3)}, {SWO}, s66 offen offset:{(t&3)*1024} lds'
    if split_pre:
        e('s_and_b32 s41, s52, 7\ns_cmp_eq_u32 s41, 3\ns_cbranch_scc0 L_hadpre')
        batch(cfg.batches[1])
        e('s_mov_b32 s68, 1')
        e.label('L_hadpre')
    e('s_cmp_eq_u32 s59, 1\ns_cbranch_scc1 L_helper')
    npost = batch('post')
    if cfg.trace: e('s_mov_b32 s96, 0\nv_mov_b32 v240, 0')
    e('s_mul_i32 s45, s62, 122880\ns_add_u32 s45, s45, s55\ns_cmp_eq_u32 s3, 3\ns_cselect_b64 vcc, -1, 0')
    e('s_lshr_b32 s42, s58, 1\ns_mov_b32 s67, 1')
    e('s_cmp_eq_u32 s68, 0\ns_cbranch_scc1 L_b0\ns_waitcnt vmcnt(0)'); e.label('L_b0')
    if cfg.batches[1] in ('late', 'post'): e('s_waitcnt vmcnt(8)')
    e('s_bitcmp1_b32 s58, 0\ns_cbranch_scc0 L_phase2')

    e0 = e
    class Filt:
        hist = property(lambda self: e0.hist)
        def label(self, *a, **k): e0.label(*a, **k)
        def __call__(self, t):
            for x in t.split('\n'):
                if not x.startswith(cfg.drop): e0(x)
    skips = [0]; NV = 10 if cfg.skip31 else 11
    def interval(ph, rdw=True, ldw='w', ldx=True, maxT=8, maxC=8, rda=True, units=range(8)):
        e = Filt() if cfg.drop else e0
        if cfg.trace: e('s_memrealtime s[98:99]')
        loads, misc = [], []
        if ldx:
            loads = [xload(t) for t in range(3)] + [(wload if ldw == 'w' else oload)(t) for t in range(8)]
            if ldw == 'w':
                if cfg.skip31:
                    skips[0] += 1
                    loads[10] = f's_cbranch_vccnz L_s{skips[0]}\n{loads[10]}\nL_s{skips[0]}:'
                if ph % 2 == 0: misc += [(0, 3, 's_and_b32 s62, s60, 15'), (0, 3, 's_mov_b32 s65, 0' if cfg.fakew else 's_lshl_b32 s65, s62, 15'), (0, 3, 's_add_u32 s65, s65, s54')]
                else: misc += [(0, 3, 's_add_u32 s65, s65, 16384'), (0, 11, 's_lshr_b64 s[60:61], s[60:61], 4')]
            misc += [(3, 3, 's_mov_b32 m0, s51')]
            if ph % 2 == 0: misc += [(3, 11, 's_add_u32 s45, s45, 12288')]
            elif ldw == 'w': misc += [(3, 11, 's_mov_b32 s45, 0' if cfg.fakex else 's_mul_i32 s45, s62, 122880'), (3, 11, 's_add_u32 s45, s45, s55')]
            misc += [(7, 7, 's_add_u32 m0, s51, 4096')]
            if ldw == 'o': misc += [(7, 7, 's_add_u32 s66, s66, 32768')]
        if rdw: misc += [(7, 11, 's_mov_b32 s51, s50'), (7, 11, 's_add_u32 s50, s50, 32768'), (7, 11, 's_cmp_eq_u32 s50, s57\ns_cselect_b32 s50, s56, s50')]
        if ldx and ldw == 'o': misc += [(11, 11, f's_add_u32 s66, s66, {262144 - 32768}')]
        done = [0]
        def slot(i, c):
            if ldx and c in cfg.vmpat[i]:
                for t in loads.pop(0).split('\n'):
                    if t.endswith(':'): e.hist[-1].states = 0; e.label(t[:-1], keep=True)
                    else: e(t)
                done[0] += 1
                while misc and misc[0][0] <= done[0] and any(m[1] <= done[0] for m in misc): e(misc.pop(0)[2])
            elif c != 'T':
                for _ in range(2):
                    if misc and misc[0][0] <= done[0]: e(misc.pop(0)[2])
        ntr = [3, 3, 2, 2, 2, 2, 2, 0]; k = 0
        for i in units:
            U = (8 * ph + i - 2) % 32; s, u = U >> 4, U & 15; j, kk = u >> 1, u & 1
            if i < maxT:
                d = DD + 16 * (j & 3); w = W + 4 * (U % 8)
                e(f'v_mfma_f32_32x32x16_bf16 v[{d}:{d+15}], v[{F+4*kk}:{F+4*kk+3}], a[{w}:{w+3}], ' + ('0' if kk == 0 else f'v[{d}:{d+15}]'))
            if i == 0 and ldx: e(f's_add_u32 m0, s53, {ph*12288}')
            slot(i, 'T')
            if rdw:
                for _ in range(ntr[i]):
                    f, h = k >> 1, k & 1; r = W + 4 * f + 2 * h; k += 1
                    e(f'ds_read_b64_tr_b16 a[{r}:{r+1}], v2 offset:{(f & 1)*16384 + h*4096 + (f >> 1)*256}')
            if i < maxC:
                P = ((U >> 2) - 1) % 8; sp, p = P >> 2, P & 3; d0 = DD + 16 * ((2 * p) & 3)
                for x in range(4):
                    bn = 4 * (U & 3) + x
                    e(f'v_cvt_pk_bf16_f32 v{B+64*sp+4*bn+p}, v{d0+bn}, v{d0+16+bn}')
            for v in range(2):
                a = A + 4 * ((2 * U + v) % 8); c = ACC + 8 * u + 4 * v; b_ = B + 64 * (1 - s) + 4 * u
                e(f'v_mfma_f32_16x16x32_bf16 a[{c}:{c+3}], a[{a}:{a+3}], v[{b_}:{b_+3}], a[{c}:{c+3}]')
                if rda:
                    a2 = A + 4 * ((2 * (U + 2) + v) % 8)
                    e(f'ds_read_b128 a[{a2}:{a2+3}], v{VX+i} offset:{((ph + 2) % 4)*12288 + v*4096}')
                slot(i, 'ab'[v])
        assert not loads and not misc
        if rdw: e('v_add_u32 v2, s50, v1')
        if cfg.trace: e('s_mov_b32 m0, s96\ns_add_u32 s96, s96, 1\nv_writelane_b32 v240, s98, m0')
    def loop():
        for ph in range(4):
            if ph == 2: e.label('L_phase2', keep=True)
            e('s_barrier')
            interval(ph)
            if ph % 2 == 0:
                e(f's_cmp_lg_u32 s67, 0\ns_cbranch_scc1 L_hook{ph}'); e.label(f'L_back{ph}', keep=True)
            if ph == 3: e('s_sub_u32 s42, s42, 1\ns_cmp_lg_u32 s42, 0')
            e(f's_waitcnt vmcnt({NV}) lgkmcnt(4)')
        e('s_cbranch_scc1 L_phase0')
    n = len(e.lines); loop(); del e.lines[n:]
    e.raw('.p2align 3'); e.label('L_phase0', keep=True)
    loop()
    e('s_barrier'); interval(0, ldw='o')
    if cfg.tlb:
        e(f'v_min_u32 v21, 14, v0\nv_lshlrev_b32 v21, 21, v21\nv_add_u32 v21, {(2 << 20) - 128}, v21\nbuffer_load_dword v253, v21, {SWS}, 0 offen')
        e(touch + '\ns_waitcnt vmcnt(13) lgkmcnt(4)')
    elif cfg.codepf > 2: e(touch + '\ns_waitcnt vmcnt(12) lgkmcnt(4)')
    else: e('s_waitcnt vmcnt(11) lgkmcnt(4)')
    e('s_barrier'); interval(1, ldw='o'); e('s_waitcnt vmcnt(8)')
    e('s_barrier'); interval(2, rdw=False, ldx=False, maxT=2, maxC=6)
    interval(3, rdw=False, ldx=False, maxT=0, maxC=0)
    interval(0, rdw=False, ldx=False, maxT=0, maxC=0, rda=False, units=range(2))
    stamp(5)
    if cfg.trace:
        e(f's_lshl_b32 s41, s2, 2\ns_add_u32 s41, s41, s3\ns_lshl_b32 s41, s41, 8\ns_add_u32 s41, s41, {STAMP_OFF + (1 << 20)}\nv_lshlrev_b32 v21, 2, v0')
        e(f'buffer_store_dword v240, v21, {SWS}, s41 offen')
    e(f'v_lshrrev_b32 v21, 4, v0\nv_mul_u32_u24 v20, {4*983040}, v21\nv_and_b32 v21, 15, v0\nv_lshl_add_u32 v20, v21, 4, v20')
    e('s_lshl_b32 s40, s52, 1\ns_lshr_b32 s41, s3, 1\ns_add_u32 s40, s40, s41\ns_mul_i32 s40, s40, 3\ns_add_u32 s40, s40, s49\ns_mul_i32 s40, s40, 5')
    e(f's_add_u32 s40, s40, s48\ns_lshl_b32 s40, s40, 11\ns_and_b32 s41, s3, 1\ns_lshl_b32 s41, s41, 8\ns_add_u32 s40, s40, s41\ns_add_u32 s40, s40, {Y_OFF}')
    if cfg.ylin: e(f'v_lshlrev_b32 v20, 4, v0\ns_lshl_b32 s40, s2, 2\ns_add_u32 s40, s40, s3\ns_lshl_b32 s40, s40, 14\ns_add_u32 s40, s40, {Y_OFF}')
    k = 0
    for hb in range(2):
        for r in range(4):
            e(f's_add_u32 s41, s40, {(hb*4+r)*2048 if cfg.ylin else r*983040}')
            for pl in range(2):
                t = DD + 8 * (k % 2); o = B + 4 * k; k += 1
                for x in range(8): e(f'v_accvgpr_read_b32 v{t+x}, a{ACC+8*(8*hb+x)+4*pl+r}')
                for x in range(4): e(f'v_cvt_pk_bf16_f32 v{o+x}, v{t+2*x}, v{t+2*x+1}')
                e(f'buffer_store_dwordx4 v[{o}:{o+3}], v20, {SWS}, s41 offen offset:{pl*1024 if cfg.ylin else hb*1024+pl*512} {cfg.y_aux}')
    e('s_branch L_phasec')
    for ph in (0, 2):
        e.label(f'L_hook{ph}')
        e(f's_cmp_lg_u32 s3, 0\ns_cbranch_scc1 L_hook{ph}_go')
        poll(f'L_polla{ph}', 64, True, TMP + 4, 63)
        e('s_mov_b64 vcc, 0')
        e.label(f'L_hook{ph}_go')
        e(f's_waitcnt vmcnt({NV})\ns_barrier\nv_mov_b32 v3, v20\ns_mov_b32 s67, 0\ns_add_u32 m0, s53, {ph*12288}\ns_sub_u32 s45, s45, 12288')
        stamp(4)
        for t in range(3): e(xload(t))
        e(f's_add_u32 s45, s45, 12288\ns_branch L_back{ph}')
    e.label('L_helper')
    if cfg.stamps: e('s_memrealtime s[80:81]\ns_memrealtime s[82:83]\ns_waitcnt lgkmcnt(0)')
    assert n0 == n1
    e('s_and_b32 s41, s15, 1\ns_lshl_b32 s41, s41, 3\ns_add_u32 s41, s41, s14\ns_lshl_b32 s41, s41, 2\ns_add_u32 s41, s41, s3')
    e('s_and_b32 s42, s41, 7\ns_lshl_b32 s42, s42, 2\ns_lshr_b32 s43, s41, 3')
    e('v_lshrrev_b32 v21, 4, v0\nv_add_u32 v21, s42, v21\nv_lshlrev_b32 v21, 20, v21\nv_and_b32 v22, 15, v0\nv_lshl_add_u32 v21, v22, 11, v21')
    nitem = (n0 - cfg.hstart) * 6 - 2 * (n0 - n2)
    for it in range(-(-nitem // 8)):
        e(f's_add_u32 s44, s43, {8*it}')
        if 8 * it + 8 > nitem: e(f's_cmp_ge_u32 s44, {nitem}\ns_cbranch_scc1 L_h1')
        e('s_mul_i32 s45, s44, 43\ns_lshr_b32 s45, s45, 8\ns_mul_i32 s46, s45, 6\ns_sub_u32 s46, s44, s46')
        e(f's_lshr_b32 s47, s46, 1\ns_mul_i32 s47, s47, {n0}\ns_add_u32 s45, s45, s47\ns_lshl_b32 s45, s45, 15')
        e(f's_and_b32 s46, s46, 1\ns_lshl_b32 s46, s46, 10\ns_add_u32 s45, s45, s46\ns_add_u32 s45, s45, {cfg.hstart*32768 + 384}')
        e(f'buffer_load_dword v{32+it}, v21, {SW}, s45 offen')
        if cfg.hsync == 'wait': e('s_waitcnt vmcnt(0)')
    e.label('L_h1')
    if cfg.fwarm: e(f's_lshl_b32 s45, s41, 13\ns_add_u32 s45, s45, {FA_OFF}\nv_lshlrev_b32 v21, 7, v0\nbuffer_load_dword v30, v21, {SWS}, s45 offen')
    if cfg.wo_pf: e(f's_lshl_b32 s45, s41, 13\nv_lshlrev_b32 v21, 7, v0\nbuffer_load_dword v31, v21, {SWO}, s45 offen')
    e.label('L_h2')
    e('s_waitcnt vmcnt(0)\ns_barrier')
    stamp(5)
    for h in range(2):
        for t in range(8):
            if t % 4 == 0: e(f's_add_u32 m0, s56, {h*32768 + t*1024}')
            e(oload(t))
            if t % 4 == 3: e(f's_add_u32 s66, s66, {32768 if t == 3 else 262144 - 32768}')
    e.label('L_phasec')
    G, YA, CA, WO = 32, 72, 120, 0
    e('s_lshl_b32 s39, s14, 1\ns_lshr_b32 s40, s15, 4\ns_add_u32 s39, s39, s40\ns_and_b32 s40, s15, 15')
    e(f'v_and_b32 v8, 31, v0\ns_lshl_b32 s41, s3, 5\ns_add_u32 s41, s41, 32\nv_add_u32 v8, s41, v8\nv_cvt_f32_u32 v8, v8\nv_mul_f32 v8, {f32(1/320)}, v8')
    e('v_lshrrev_b32 v9, 5, v0\nv_cvt_f32_u32 v9, v9\nv_mul_f32 v9, 0x3e800000, v9')
    twiddles(e, G, 8, 9, [2 * j + 1 for j in range(8)], 184)
    if cfg.fbmode == 'push':
        e('v_lshrrev_b32 v21, 1, v0\nv_lshlrev_b32 v21, 12, v21\nv_and_b32 v22, 1, v0\nv_lshl_add_u32 v21, v22, 8, v21')
        e('s_lshr_b32 s41, s52, 3\ns_mul_i32 s41, s41, 5\ns_mul_i32 s42, s49, 10\ns_add_u32 s41, s41, s42\ns_add_u32 s41, s41, s48\ns_lshl_b32 s41, s41, 3')
        e(f's_and_b32 s42, s52, 7\ns_lshl_b32 s42, s42, 9\ns_add_u32 s41, s41, s42\ns_add_u32 s41, s41, {FB_OFF}')
        e(f's_lshl_b32 s43, s39, 4\ns_add_u32 s43, s43, s40\ns_lshl_b32 s42, s43, 8\ns_add_u32 s42, s42, {FB_OFF}')
    else:
        e('v_lshrrev_b32 v21, 3, v0\nv_lshlrev_b32 v21, 15, v21\nv_and_b32 v22, 7, v0\nv_lshl_add_u32 v21, v22, 4, v21')
        e('s_lshr_b32 s41, s52, 3\ns_mul_i32 s41, s41, 5\ns_mul_i32 s42, s49, 10\ns_add_u32 s41, s41, s42\ns_add_u32 s41, s41, s48\ns_lshl_b32 s41, s41, 7')
        e(f's_and_b32 s42, s52, 7\ns_lshl_b32 s42, s42, 12\ns_add_u32 s41, s41, s42\ns_add_u32 s41, s41, {FB_OFF}')
        e(f's_lshl_b32 s43, s39, 4\ns_add_u32 s43, s43, s40\ns_lshr_b32 s42, s40, 1\ns_lshl_b32 s42, s42, 12\ns_add_u32 s42, s42, {FB_OFF}')
        if cfg.fbmode == 'pull8': e('s_lshl_b32 s44, s14, 15\ns_add_u32 s42, s42, s44')
    e('s_and_b32 s44, s3, 1\ns_lshr_b32 s45, s3, 1')
    e('s_lshl_b32 s46, s39, 5\ns_add_u32 s46, s46, s40\ns_lshl_b32 s47, s44, 4\ns_add_u32 s46, s46, s47')
    e(f's_mul_i32 s46, s46, 30\ns_add_u32 s46, s46, s45\ns_lshl_b32 s46, s46, 10\ns_add_u32 s46, s46, {Y_OFF}')
    e('v_lshlrev_b32 v2, 4, v0\nv_add_u32 v3, 0x10000, v2\ns_lshl_b32 s47, s3, 10\ns_add_u32 s47, s47, 0x10000')
    e('v_lshrrev_b32 v7, 5, v0\nv_bfe_u32 v8, v0, 2, 2\nv_lshl_add_u32 v7, v7, 2, v8\nv_lshlrev_b32 v4, 7, v7')
    e('v_bfe_u32 v7, v0, 4, 1\nv_and_b32 v8, 1, v0\nv_lshl_add_u32 v7, v7, 1, v8\nv_bfe_u32 v8, v0, 3, 1\nv_xor_b32 v8, s44, v8\nv_lshl_add_u32 v7, v8, 2, v7')
    e('v_lshl_add_u32 v4, v7, 4, v4\nv_bfe_u32 v7, v0, 1, 1\nv_lshl_add_u32 v4, v7, 3, v4')
    e('s_waitcnt vmcnt(0)\ns_barrier')
    stamp(6)
    e(f's_or_b32 s50, s3, s59\ns_cmp_lg_u32 s50, 0\ns_cbranch_scc1 L_c0')
    if cfg.fbmode == 'push': publish(32, 21, 41)
    else:
        e(f'v_mov_b32 v220, s{TAG}\nv_mov_b32 v221, s{TAG+1}\nv_mov_b32 v222, s{TAG}\nv_mov_b32 v223, s{TAG+1}')
        if cfg.fbmode == 'pull1': e('s_mov_b64 exec, 0xff')
        e(f'buffer_store_dwordx4 v[220:223], v21, {SWS}, s41 offen sc1\ns_mov_b64 exec, -1')
    e.label('L_c0')
    e(f's_cmp_eq_u32 s3, 0\ns_cselect_b32 s51, -1, 0\ns_mov_b32 s38, 0\nv_min_u32 v23, 29, v0\nv_lshlrev_b32 v23, {3 if cfg.fbmode == "push" else 7}, v23')
    def await_split(*css):
        L = f'L_pollb{css[0]}'
        e.label(L, keep=True)
        e(f's_and_b32 s50, s51, {sum(0x3ff << (10 * cs) for cs in css)}\ns_cbranch_scc0 {L}_out')
        e(f'buffer_load_dwordx2 v[{TMP+4}:{TMP+5}], v23, {SWS}, s42 offen sc1\ns_add_u32 s38, s38, 1\ns_waitcnt vmcnt(0)')
        e(f'v_cmp_ne_u64 vcc, s[{TAG}:{TAG+1}], v[{TMP+4}:{TMP+5}]\ns_cmp_lt_u32 s38, {SPIN}\ns_nop 0\ns_cselect_b32 s51, vcc_lo, 0' + (f'\ns_sleep {cfg.psleep}' if cfg.psleep else '') + f'\ns_branch {L}')
        e.label(L + '_out', keep=True)
        e('s_barrier')
        for i in [5 * cs + x for cs in css for x in range(5)]:
            e(f's_add_u32 m0, s47, {i*4096}\ns_add_u32 s41, s46, {i*2048}\nbuffer_load_dwordx4 v2, {SWS}, s41 offen sc1 lds')
    started = set()
    def idft(i0, i1, left):
        e(f's_waitcnt vmcnt({left})\ns_barrier')
        fr = list(range(4 * i0, 4 * i1))
        rdy = lambda x: e(f'ds_read_b128 v[{YA+4*(x%12)}:{YA+4*(x%12)+3}], v3 offset:{fr[x]*1024}')
        for x in range(min(8, len(fr))): rdy(x)
        for x, ph in enumerate(fr):
            m, side = ph >> 1, ph & 1; kb = m % 10; c = CA + 16 * side
            e(f'v_mfma_f32_32x32x16_bf16 v[{c}:{c+15}], v[{YA+4*(x%12)}:{YA+4*(x%12)+3}], v[{G+4*kb}:{G+4*kb+3}], ' + (f'v[{c}:{c+15}]' if side in started else '0'))
            started.add(side)
            if x + 8 < len(fr): rdy(x + 8)
    c0, c1, c2 = cfg.yorder
    await_split(c0)
    if cfg.codepf > 3: e(touch)
    for ks in range(32):
        for h in range(2): e(f'ds_read_b64_tr_b16 a[{WO+4*ks+2*h}:{WO+4*ks+2*h+1}], v4 offset:{ks*2048+h*1024}')
    e('s_waitcnt lgkmcnt(0)')
    if cfg.ymode == 1:
        idft(5 * c0, 5 * c0 + 5, 0)
        await_split(c1, c2)
        stamp(7)
        for i0, i1, left in ((0, 3, 7), (3, 5, 5)): idft(5 * c1 + i0, 5 * c1 + i1, left)
        for i0, i1, left in ((0, 3, 2), (3, 5, 0)): idft(5 * c2 + i0, 5 * c2 + i1, left)
    else:
        await_split(c1)
        idft(5 * c0, 5 * c0 + 5, 5)
        await_split(c2)
        stamp(7)
        idft(5 * c1, 5 * c1 + 5, 5)
        idft(5 * c2, 5 * c2 + 3, 2)
        idft(5 * c2 + 3, 5 * c2 + 5, 0)
    e(f's_lshl_b32 s50, s39, 2\ns_add_u32 s50, s50, s3\ns_lshl_b32 s50, s50, 5\ns_lshl_b32 s41, s40, 1\ns_add_u32 s50, s50, s41\ns_lshl_b32 s50, s50, 10\ns_add_u32 s50, s50, {Z_OFF}')
    stamp(8)
    L2E = 1.4426950408889634
    f_, g_, t_ = CA, CA + 16, YA
    e(f's_mov_b32 s68, {f32(2*L2E/80)}\ns_mov_b32 s70, {f32(-L2E/80)}')
    pr = lambda r, i: f'v[{r+i}:{r+i+1}]'
    for i in range(0, 16, 2): e(f'v_pk_mul_f32 {pr(f_, i)}, {pr(f_, i)}, s[68:69] op_sel_hi:[1,0]')
    for i in range(0, 16, 2): e(f'v_pk_mul_f32 {pr(g_, i)}, {pr(g_, i)}, s[70:71] op_sel_hi:[1,0]')
    for i in range(32): e(f'v_exp_f32 v{f_+i}, v{f_+i}')
    for i in range(0, 32, 2): e(f'v_pk_add_f32 {pr(f_, i)}, {pr(f_, i)}, 1.0 op_sel_hi:[1,0]')
    for i in range(32): e(f'v_rcp_f32 v{f_+i}, v{f_+i}')
    for i in range(0, 16, 2): e(f'v_pk_fma_f32 {pr(f_, i)}, {pr(f_, i)}, -2.0, 1.0 op_sel_hi:[1,0,0]')
    for i in range(0, 16, 2): e(f'v_pk_mul_f32 {pr(f_, i)}, {pr(f_, i)}, {pr(g_, i)}')
    for i in range(8): e(f'v_cvt_pk_bf16_f32 v{12+i}, v{f_+2*i}, v{f_+2*i+1}')
    e(f'buffer_store_dwordx4 v[12:15], v2, {SWS}, s50 offen sc1\nbuffer_store_dwordx4 v[16:19], v2, {SWS}, s50 offen offset:1024 sc1')
    e(f'v_lshlrev_b32 v21, 7, v0\ns_lshl_b32 s41, s39, 11\ns_lshl_b32 s42, s40, 3\ns_add_u32 s41, s41, s42\ns_add_u32 s41, s41, {FC_OFF}')
    e(f's_lshl_b32 s42, s43, 7\ns_add_u32 s42, s42, {FC_OFF}')
    e('s_lshl_b32 s46, s39, 1\ns_lshr_b32 s47, s40, 3\ns_add_u32 s46, s46, s47\ns_and_b32 s47, s40, 7')
    e(f's_lshl_b32 s50, s46, 16\ns_lshl_b32 s51, s45, 15\ns_lshl_b32 s53, s44, 12\ns_add_u32 s51, s51, s53\ns_add_u32 s50, s50, s51\ns_add_u32 s50, s50, {Z_OFF}')
    e('s_add_u32 s51, s51, 0x10000\ns_lshl_b32 s53, s45, 15\nv_add_u32 v5, s53, v3')
    e('s_lshr_b32 s54, s46, 4\ns_bfe_u32 s55, s46, 0x10003\ns_and_b32 s56, s46, 7\ns_lshl_b32 s56, s56, 6\ns_lshl_b32 s57, s45, 5\ns_add_u32 s56, s56, s57')
    e('s_mul_i32 s54, s54, 1000\ns_add_u32 s54, s54, s55\ns_lshl_b32 s54, s54, 10\ns_lshl_b32 s55, s47, 7\ns_add_u32 s54, s54, s55\ns_lshl_b32 s55, s44, 6\ns_add_u32 s54, s54, s55')
    e('v_and_b32 v7, 31, v0\nv_add_u32 v7, s56, v7\nv_lshrrev_b32 v8, 5, v0\nv_lshlrev_b32 v8, 4, v8\nv_add_u32 v8, s54, v8\nv_lshl_add_u32 v6, v7, 11, v8')
    e(f'v_mov_b32 v9, {BIG}\ns_movk_i32 s55, 500\nv_cmp_gt_u32 vcc, s55, v7\nv_cndmask_b32 v6, v9, v6, vcc')
    e('s_waitcnt vmcnt(0)\ns_barrier')
    stamp(9)
    e('s_cmp_lg_u32 s3, 0\ns_cbranch_scc1 L_d1')
    publish(16, 21, 41)
    poll('L_pollc', 16, False, TMP + 4, 42)
    e.label('L_d1')
    e('s_barrier')
    stamp(10)
    for ch in range(4):
        e(f's_add_u32 m0, s51, {8*ch*1024}\ns_add_u32 s41, s50, {8*ch*1024}')
        for x in range(4): e(f'buffer_load_dwordx4 v2, {SWS}, s41 offen offset:{x*1024} sc1 lds')
    ZB, OA = 32, 96
    for ch in range(4):
        e(f's_waitcnt vmcnt({12-4*ch})\ns_barrier')
        zb = ZB + 32 * (ch & 1)
        for x in range(8): e(f'ds_read_b128 v[{zb+4*x}:{zb+4*x+3}], v5 offset:{(8*ch+x)*1024}')
        for x in range(8):
            ks = 8 * ch + x
            e(f'v_mfma_f32_32x32x16_bf16 v[{OA}:{OA+15}], a[{WO+4*ks}:{WO+4*ks+3}], v[{zb+4*x}:{zb+4*x+3}], ' + ('0' if ks == 0 else f'v[{OA}:{OA+15}]'))
    for i in range(8): e(f'v_cvt_pk_bf16_f32 v{12+i}, v{OA+2*i}, v{OA+2*i+1}')
    e(f'buffer_store_dwordx4 v[12:15], v6, {SOUT}, 0 offen {cfg.out_aux}\nbuffer_store_dwordx4 v[16:19], v6, {SOUT}, 0 offen offset:32 {cfg.out_aux}')
    e('s_or_b32 s41, s2, s3\ns_cmp_lg_u32 s41, 0\ns_cbranch_scc1 L_fin')
    e(f'v_mov_b32 v21, 0\ns_mov_b32 s41, {EP_OFF}')
    publish(1, 21, 41)
    e.label('L_fin')
    if cfg.stamps:
        e('s_waitcnt vmcnt(0)\ns_memrealtime s[94:95]\ns_waitcnt lgkmcnt(0)')
        for i in range(12): e(f'v_mov_b32 v{8+i}, s{72+2*i}')
        e(f's_lshl_b32 s41, s2, 2\ns_add_u32 s41, s41, s3\ns_lshl_b32 s41, s41, 6\ns_add_u32 s41, s41, {STAMP_OFF}\nv_mov_b32 v6, 0')
        for i in range(3): e(f'buffer_store_dwordx4 v[{8+4*i}:{11+4*i}], v6, {SWS}, s41 offen offset:{16*i}')
        if cfg.cyc: e(f's_sub_u32 s98, s98, s96\nv_mov_b32 v7, s98\nbuffer_store_dword v7, v6, {SWS}, s41 offen offset:48')
    e.label('L_end'); e('s_endpgm')
    if cfg.diag:
        k, mult, red = cfg.diag
        e.raw('.globl diag_kernel\n.p2align 8\n.type diag_kernel,@function'); e.label('diag_kernel')
        e('s_cmp_ge_u32 s2, 1\ns_cbranch_scc1 L_dend\ns_memrealtime s[20:21]\ns_load_dwordx2 s[12:13], s[0:1], 40\ns_waitcnt lgkmcnt(0)')
        srd(e, 24, 12, WSB)
        e(f'v_min_u32 v0, 59, v0\nv_lshlrev_b32 v1, 8, v0\nv_add_u32 v1, {STAMP_OFF}, v1')
        for i in range(4):
            e(f's_mov_b32 s30, {i*60*256}\nbuffer_load_dword v{4+i}, v1, {SWS}, s30 offen sc1\nbuffer_load_dword v{8+i}, v1, {SWS}, s30 offen offset:{4*k} sc1')
        e('s_waitcnt vmcnt(0)')
        for i in range(1, 4): e(f'v_min_u32 v4, v4, v{4+i}\nv_{red}_u32 v8, v8, v{8+i}')
        e('s_nop 1\nv_readlane_b32 s22, v4, 0\nv_readlane_b32 s23, v8, 0')
        for l in range(1, 60): e(f'v_readlane_b32 s30, v4, {l}\nv_readlane_b32 s31, v8, {l}\ns_nop 1\ns_min_u32 s22, s22, s30\ns_{red}_u32 s23, s23, s31')
        e(f's_sub_u32 s22, s23, s22\ns_min_u32 s22, s22, 20000\ns_mul_i32 s22, s22, {mult}\ns_add_u32 s22, s22, 300')
        e.label('L_diag')
        e('s_memrealtime s[28:29]\ns_waitcnt lgkmcnt(0)\ns_sub_u32 s28, s28, s20\ns_cmp_lt_u32 s28, s22\ns_cbranch_scc1 L_diag')
        e.label('L_dend'); e('s_endpgm')
        out = f'; @launch kernel={NAME} grid=(256,1,1) block=(256,1,1) lds=159744\n; @launch kernel=diag_kernel grid=(1,1,1) block=(64,1,1) lds=0\n'
        out += '.amdgcn_target "amdgcn-amd-amdhsa--gfx950"\n.text\n' + e.text()
        out += '.section .rodata,"a"\n' + kernel_desc(NAME, 448, sgpr=100, accum=256) + '\n' + kernel_desc('diag_kernel', 16) + '\n'
        open(path, 'w').write(out); return
    out = '; @launch grid=(256,1,1) block=(256,1,1) lds=159744\n.amdgcn_target "amdgcn-amd-amdhsa--gfx950"\n.text\n' + e.text()
    out += '.section .rodata,"a"\n' + kernel_desc(NAME, 448, sgpr=100, accum=256) + '\n'
    open(path, 'w').write(out)

if __name__ == '__main__':
    kw = {}
    for a in sys.argv[2:]:
        k, v = a.split('=', 1); kw[k] = eval(v)
    generate(sys.argv[1], Cfg(**kw))
```

```python
import sys, struct
from emit import Emit, kernel_desc

NAME = 'standalone__autoregressive_conv_wavenet__speech_kernel'
XB, WB, WOB, OB, WSB = 2048000, 31 * 512 * 1024 * 2, 512 * 512 * 2, 2048000, 256 << 20
XF_OFF, Y_OFF, Z_OFF = 0, 4 << 20, 24 << 20
FA_OFF, FB_OFF, FC_OFF, EP_OFF = 28 << 20, (28 << 20) + 0x40000, (28 << 20) + 0x20000, (28 << 20) + 0x30000
XC_OFF = (28 << 20) + 0x4000
STAMP_OFF = 128 << 20
BIG = 0x7ff00000
SX, SW, SWS, SWO, SOUT = 's[16:19]', 's[20:23]', 's[24:27]', 's[28:31]', 's[32:35]'
TAG = 36
SPIN = 1 << 14
def f32(x): return '0x%08x' % struct.unpack('<I', struct.pack('<f', x))[0]

class Cfg:
    stamps = False
    splits = (11, 11, 10)
    order = None
    batches = ('early', 'pre', 'post', 'post')
    leaders = (4, 0, 1, 2, 3)
    wo_pf = 1
    hsync = 'none'
    slownat = 0
    hstart = 3
    slowpre = 0
    lead = 1
    x_aux = 'nt'
    fakew = 0
    vmpat = ('a', 'Tb', 'a', 'a', 'Tb', 'a', 'Tb', 'a')
    skip31 = 1
    xf_aux = 'sc1'
    ylin = 0
    y_aux = 'sc1'
    tlb = 0
    early = 1
    stale = 1
    adapt = 0
    merge = 0
    tlbw = 0
    ahead = 0
    pubpos = 1
    leadpos = None
    ystag = 1
    ffirst = 1
    tpre = 16
    nobar = 0
    fakexor = 0
    ofull = 0
    wopos = 0
    sidepre = 38
    touchpos = 0
    pre, late, hookpos = 1, 0, 2
    zlocal = 1
    zl_aux = ''
    zld_aux = 'sc1'
    zahead = 4
    zclean = 0
    zovery = 1
    yld_aux = 'sc1'
    wolate = 1
    fbmode = 'push'
    fwarm = 1
    awarm = 1
    nopub = 0
    psleep = 0
    remap = 0
    ymode = 0
    trace = 0
    fakex = 0
    drop = ()
    age = 14
    cyc = None
    probe = 'twid'
    out_aux = ''
    yorder = (2, 0, 1)
    codepf = 2
    diag = None
    helper = None
    def __init__(self, **kw): self.__dict__.update(kw)

def step_order(cfg, g, slow, S):
    o = [g & 1]
    sched = {} if slow else {x: (cfg.leaders[(x - 2) % 5], cfg.lead + x - 2) for x in range(2, S)}
    for p in range(1, S):
        mine = [x for x, (lg, lp) in sched.items() if lg == g and lp <= p and x not in o]
        o.append(mine[0] if mine else min(y for y in range(S) if y not in o))
    return o

def srd(e, d, base, nbytes):
    e(f's_mov_b32 s{d}, s{base}\ns_mov_b32 s{d+1}, s{base+1}\ns_mov_b32 s{d+2}, {nbytes}\ns_mov_b32 s{d+3}, 0x00020000')

def twiddles(e, dst, mul, base, c0, t, stride=16, nblk=10):
    e(f'v_mul_f32 v{t+24}, {f32(stride)}, v{mul}\nv_cos_f32 v{t+24}, v{t+24}')
    for b in range(2):
        for j in range(8): e(f'v_fmamk_f32 v{t+8*b+j}, v{mul}, {f32(c0[j] + stride * b)}, v{base}')
        for j in range(8): e(f'v_cos_f32 v{t+8*b+j}, v{t+8*b+j}')
    e(f'v_add_f32 v{t+24}, v{t+24}, v{t+24}')
    for b in range(nblk):
        r, p, q = t + 8 * (b % 3), t + 8 * ((b - 1) % 3), t + 8 * ((b - 2) % 3)
        if b >= 2:
            for j in range(0, 8, 2):
                e(f'v_pk_fma_f32 v[{r+j}:{r+j+1}], v[{t+24}:{t+25}], v[{p+j}:{p+j+1}], v[{q+j}:{q+j+1}] op_sel_hi:[0,1,1] neg_lo:[0,0,1] neg_hi:[0,0,1]')
        for j in range(0, 8, 2): e(f'v_cvt_pk_bf16_f32 v{dst+4*b+j//2}, v{r+j}, v{r+j+1}')

def generate(path, cfg):
    e = Emit(); e.age = cfg.age
    def stamp(k):
        if cfg.stamps and cfg.cyc and k in cfg.cyc: e(f's_memtime s[{96+2*cfg.cyc.index(k)}:{97+2*cfg.cyc.index(k)}]')
        if cfg.stamps: e(f's_memrealtime s[{72+2*k}:{73+2*k}]\ns_waitcnt lgkmcnt(0)')
    def publish(lanes, voff, soff, aux='sc1'):
        e(f'v_mov_b32 v222, s{TAG}\nv_mov_b32 v223, s{TAG+1}\ns_mov_b32 exec_lo, {(1 << lanes) - 1}\ns_mov_b32 exec_hi, 0')
        e(f'buffer_store_dwordx2 v[222:223], v{voff}, {SWS}, s{soff} offen {aux}\ns_mov_b64 exec, -1')
    def poll(lbl, lanes, wide, tmp, soff):
        e(f'v_lshlrev_b32 v{tmp+4}, {4 if wide else 3}, v0\ns_mov_b32 s38, 0')
        if lanes < 64: e(f's_mov_b32 exec_lo, {(1 << lanes) - 1}\ns_mov_b32 exec_hi, 0')
        e.label(lbl)
        e(f'buffer_load_dwordx{4 if wide else 2} v[{tmp}:{tmp+(3 if wide else 1)}], v{tmp+4}, {SWS}, s{soff} offen sc1')
        e(f's_add_u32 s38, s38, 1\ns_waitcnt vmcnt(0)\nv_cmp_ne_u64 vcc, s[{TAG}:{TAG+1}], v[{tmp}:{tmp+1}]')
        if wide: e(f'v_cmp_ne_u64 s[70:71], s[{TAG}:{TAG+1}], v[{tmp+2}:{tmp+3}]\ns_nop 1\ns_or_b64 vcc, vcc, s[70:71]')
        e(f's_cmp_ge_u32 s38, {SPIN}\ns_cbranch_scc1 {lbl}_out\ns_cbranch_vccnz {lbl}')
        e.label(lbl + '_out')
        e('s_mov_b64 exec, -1')

    XBASE, XLDS = 3 * 32768, 147456
    n0, n1, n2 = cfg.splits
    VX, VW, F, DD, B, TMP = 4, 12, 24, 32, 96, 224
    ACC, W, A = 0, 128, 160
    e.raw(f'.globl {NAME}\n.p2align 8\n.type {NAME},@function'); e.label(NAME)
    e('s_cmp_ge_u32 s2, 256\ns_cbranch_scc1 L_end')
    if cfg.stamps: e('s_memrealtime s[72:73]')
    if cfg.cyc: e('s_memtime s[96:97]\ns_memtime s[98:99]')
    for d, off in ((16, 0), (20, 8), (24, 40), (28, 16), (32, 24)): e(f's_load_dwordx2 s[{d}:{d+1}], s[0:1], {off}')
    CP = 250
    touch = f'global_load_dword v{CP+2}, v[{CP}:{CP+1}], off'
    e(f's_lshr_b32 s15, s2, 3\nv_lshl_add_u32 v25, v0, 5, s15\ns_getpc_b64 s[12:13]\nv_min_u32 v25, (L_end-{NAME})/128, v25\nv_lshlrev_b32 v25, 7, v25')
    e(f's_and_b32 s12, s12, 0xffffff00\nv_mov_b32 v{CP+1}, s13\nv_add_co_u32 v{CP}, vcc, s12, v25\nv_lshrrev_b32 v1, 6, v0\nv_and_b32 v0, 63, v0')
    e(f'v_addc_co_u32 v{CP+1}, vcc, 0, v{CP+1}, vcc\nv_readfirstlane_b32 s3, v1')
    if cfg.touchpos == 0: e(touch)
    e('s_and_b32 s14, s2, 7\ns_lshr_b32 s39, s15, 1\ns_and_b32 s40, s15, 1\ns_lshl1_add_u32 s40, s14, s40')
    e('s_lshr_b32 s4, s39, 3\ns_mul_i32 s4, s4, 1024000\ns_and_b32 s41, s39, 3\ns_lshl3_add_u32 s41, s41, s3\ns_sub_u32 s41, s41, 2\ns_lshl_b32 s41, s41, 15')
    e('s_bfe_u32 s42, s39, 0x10002\ns_lshl4_add_u32 s42, s42, s40\ns_lshl_b32 s42, s42, 6\ns_add_u32 s41, s41, s42')
    e('v_lshrrev_b32 v2, 2, v0\nv_and_b32 v3, 3, v0\nv_lshlrev_b32 v2, 11, v2\nv_lshl_add_u32 v2, v3, 4, v2\nv_add_u32 v4, s41, v2\nv_add_u32 v5, 0x20000, v4\nv_add_u32 v6, 0x40000, v4')
    e(f'v_min_u32 v4, {BIG}, v4')
    e(f's_lshl_b32 s5, s3, 10\ns_add_u32 s5, s5, {XLDS}')
    for d, n in ((16, 1024000), (20, WB), (24, WSB)): e(f's_mov_b32 s{d+2}, {n}\ns_mov_b32 s{d+3}, 0x00020000')
    assert (n0, n1, n2) == (11, 11, 10)
    e('s_mul_i32 s41, s15, 52\ns_lshr_b32 s41, s41, 8\ns_mul_i32 s48, s41, 5\ns_sub_u32 s48, s15, s48')
    e('s_mul_i32 s42, s14, 6\ns_add_u32 s42, s42, s41\ns_min_u32 s43, s14, 5\ns_lshl3_add_u32 s43, s43, 3')
    e(f's_cmp_ge_u32 s15, 30\ns_cselect_b32 s59, 1, 0\ns_cselect_b32 s42, s43, s42\ns_cselect_b32 s41, 0, 1\ns_cselect_b32 s62, {cfg.hstart - 1}, 2')
    e('s_lshr_b32 s49, s42, 4\ns_and_b32 s52, s42, 15\ns_mul_i32 s43, s49, 11\ns_lshr_b32 s68, s48, s41\ns_and_b32 s68, s68, 1')
    e('s_waitcnt lgkmcnt(0)')
    if cfg.probe == 'karg': stamp(1)
    e(f's_mov_b32 m0, s5\ns_add_u32 s16, s16, s4\ns_addc_u32 s17, s17, 0\nbuffer_load_dwordx4 v4, {SX}, 0 offen {cfg.x_aux} lds')
    e(f's_add_u32 m0, s5, 4096\ns_mov_b32 s4, {EP_OFF}\nbuffer_load_dwordx4 v5, {SX}, 0 offen {cfg.x_aux} lds')
    e(f's_add_u32 m0, s5, 8192\ns_cmp_ge_u32 s3, 2\ns_load_dwordx2 s[46:47], s[24:25], s4\ns_cbranch_scc1 L_x2\nbuffer_load_dwordx4 v6, {SX}, 0 offen {cfg.x_aux} lds')
    e.label('L_x2')
    if cfg.touchpos == 1: e(touch)
    e(f's_lshl_b32 s41, s2, 7\ns_add_u32 s41, s41, {FA_OFF}\nbuffer_load_dword v253, off, {SWS}, s41')
    if cfg.tlbw & 1: e(f'v_and_b32 v24, 1, v0\nv_lshlrev_b32 v24, 21, v24\nbuffer_load_dword v26, v24, {SWS}, 0 offen sc1 nt')
    if cfg.tlbw & 2: e(f'v_and_b32 v24, 3, v0\nv_lshl_add_u32 v24, s3, 2, v24\nv_lshlrev_b32 v24, 21, v24\nbuffer_load_dword v27, v24, {SW}, 0 offen')
    e('s_lshl2_add_u32 s41, s59, s48\ns_and_b32 s42, s48, 1\ns_cmp_lt_u32 s41, 4\ns_cselect_b32 s62, s42, s62')
    e('s_lshl_b32 s54, s43, 15\ns_lshl_b32 s41, s52, 7\ns_add_u32 s54, s54, s41')
    e('s_lshl1_add_u32 s65, s62, s68\ns_lshl_b32 s65, s65, 14\ns_add_u32 s65, s65, s54')
    e('s_lshl_b32 s56, s3, 13\ns_cmp_eq_u32 s49, 2\ns_cselect_b32 s58, 10, 11\ns_cselect_b32 s50, 1, 2\ns_cselect_b32 s64, 2, 0\ns_cselect_b32 s51, 0, 1')
    e('s_cmp_eq_u32 s68, 1\ns_cselect_b32 s69, s64, s50\ns_cselect_b32 s64, s50, s64\ns_lshl_b32 s69, s69, 15\ns_add_u32 s69, s69, s56')
    e('v_bfe_u32 v21, v0, 3, 1\nv_lshrrev_b32 v22, 4, v0\nv_lshl_add_u32 v21, v21, 2, v22\nv_and_b32 v22, 7, v0\nv_lshlrev_b32 v22, 4, v22')
    e(f's_lshl_b32 s41, s3, 23\nv_lshl_add_u32 v21, v21, 11, v22\nv_add_u32 v{VW}, s41, v21')
    for t in range(1, 4): e(f'v_xor_b32 v23, {32*t}, v{VW}\nv_add_u32 v{VW+t}, {(t << 20) - t * 1024}, v23')
    wload = lambda t: f'buffer_load_dwordx4 v{VW+t}, {SW}, s65 offen offset:{(t&3)*1024} lds'
    xload = lambda t: f'buffer_load_dwordx4 v3, {SWS}, s45 offen offset:{t*1024} {cfg.xf_aux} lds'
    def batch(i):
        if i == 2: e('s_xor_b32 s65, s65, 16384')
        e(f's_add_u32 m0, s{64 if i >> 1 else 69}, {(i & 1) * 4096}')
        for t in range(4): e(wload(4 * (i & 1) + t))
    if cfg.early == 1: batch(0)
    for t in range(4): e(f'v_add_u32 v{VW+4+t}, 0x400000, v{VW+t}')
    F0, F1, AB, A1, D0, D1, T0 = 32, 72, 92, 132, 160, 176, 184
    e(f'v_and_b32 v11, 15, v0\nv_lshl_add_u32 v8, s3, 4, v11\nv_lshl_add_u32 v8, v8, 1, 1\nv_cvt_f32_u32 v8, v8\nv_mul_f32 v8, {f32(1/320)}, v8')
    e('v_bfe_u32 v6, v0, 4, 1\nv_cvt_f32_u32 v9, v6\nv_mul_f32 v9, 0x3e800000, v9')
    e('v_lshrrev_b32 v4, 5, v0\nv_lshlrev_b32 v10, 3, v4\nv_cvt_f32_u32 v10, v10\nv_fma_f32 v9, v8, v10, v9')
    twiddles(e, F0, 8, 9, list(range(8)), T0)
    if cfg.early == 2: batch(0)
    e('s_and_b32 s41, s52, 7\ns_cmp_eq_u32 s41, 3\ns_cselect_b32 s67, 1, ' + ('0' if cfg.pre else '1'))
    if cfg.pre:
        e('s_cbranch_scc1 L_nopre'); batch(1); e.label('L_nopre')
    e(f'v_bfe_u32 v2, v0, 2, 2\nv_lshlrev_b32 v2, 6, v2\nv_lshl_add_u32 v2, v3, 3, v2\nv_add_u32 v2, {XLDS}, v2')
    e('v_lshl_add_u32 v10, v4, 9, v2\nv_lshl_add_u32 v10, v6, 5, v10\nv_lshrrev_b32 v7, 4, v0\nv_lshl_add_u32 v5, v7, 9, v2\ns_lshr_b32 s44, s3, 1\nv_lshl_add_u32 v5, s44, 5, v5')
    class Q_(list):
        def __call__(self, t): self.extend(t.split('\n'))
    side = Q_()
    side(f'v_cvt_f32_u32 v8, v11\nv_mov_b32 v9, {f32(129/320)}\nv_fmac_f32 v9, {f32(2/320)}, v8\ns_and_b32 s45, s3, 1\ns_mul_i32 s41, s45, 0x3e800000')
    side('v_lshlrev_b32 v7, 3, v7\nv_cvt_f32_u32 v7, v7\nv_fma_f32 v8, v9, v7, s41')
    twiddles(side, F1, 9, 8, list(range(8)), T0, 32, 5)
    off = Q_()
    off('v_bfe_u32 v20, v0, 3, 1\nv_mul_u32_u24 v20, 12288, v20\ns_lshr_b32 s5, s39, 1\nv_and_b32 v21, 7, v0\nv_xor_b32 v21, s5, v21\nv_lshl_add_u32 v21, v21, 4, v20')
    off('v_lshl_add_u32 v22, v4, 11, v21\nv_lshl_add_u32 v20, v6, 12, v22\nv_xor_b32 v23, 1, v6\nv_lshl_add_u32 v22, v23, 30, v22')
    off(f's_mul_i32 s4, s40, {2*122880}\ns_lshl_b32 s5, s39, 7\ns_add_u32 s4, s4, s5\ns_mul_i32 s5, s3, 24576\ns_add_u32 s6, s4, s5\ns_add_u32 s7, s6, 122880')
    off('s_add_u32 s8, s6, 4096\ns_add_u32 s9, s7, 4096\ns_mov_b32 s10, 0x80008000')
    tail = Q_()
    tail(f's_mul_i32 s44, s44, 122880\ns_add_u32 s44, s44, s4\ns_add_u32 s44, s44, {4*24576}\ns_add_u32 s4, s45, 1\ns_lshl_b32 s4, s4, 12\ns_xor_b32 s5, s45, 1\ns_lshl_b32 s5, s5, 30')
    tail('s_sub_u32 s5, s5, s4\nv_mul_lo_u32 v23, v4, s5\nv_lshl_add_u32 v21, v6, 11, v21\nv_add3_u32 v11, v21, v23, s4')
    tail(f's_getreg_b32 s38, hwreg(HW_REG_XCC_ID, 0, 4)\ns_lshr_b32 s4, s15, 4\ns_lshl1_add_u32 s4, s14, s4\ns_lshl_b32 s4, s4, 7\ns_add_u32 s100, s4, {XC_OFF}\nv_mov_b32 v254, s38')
    tail('s_and_b32 s4, s15, 15\ns_lshl2_add_u32 s4, s4, s100')
    for t in side: e(t)
    side = off + tail
    def shadow(n):
        for _ in range(min(n, len(side))): e(side.pop(0))
    shadow(cfg.sidepre)
    if cfg.probe == 'twid': stamp(1)
    ny = 1 + bin(cfg.tlbw).count('1') + (cfg.touchpos == 1) + (4 if cfg.early else 0)
    e(f's_cmp_eq_u32 s67, 0\ns_waitcnt vmcnt({ny+4})\ns_cbranch_scc1 L_xok\ns_waitcnt vmcnt({ny})'); e.label('L_xok')
    e('s_waitcnt lgkmcnt(0)\ns_barrier')
    if cfg.probe == 'xin': stamp(1)
    def rd(kk):
        for h in range(2):
            if kk < 10: e(f'ds_read_b64_tr_b16 v[{AB+4*kk+2*h}:{AB+4*kk+2*h+1}], v10 offset:{kk*1024+h*256}')
            else: e(f'ds_read_b64_tr_b16 v[{A1+4*(kk-10)+2*h}:{A1+4*(kk-10)+2*h+1}], v5 offset:{(kk-10)*2048+h*256}')
    order = list(range(10, 15)) + list(range(10))
    for kk in order[:7]: rd(kk)
    shadow(14)
    for kk in range(5):
        e(f'v_mfma_f32_16x16x32_bf16 v[{D1}:{D1+3}], v[{A1+4*kk}:{A1+4*kk+3}], v[{F1+4*kk}:{F1+4*kk+3}], ' + ('0' if kk == 0 else f'v[{D1}:{D1+3}]'))
        rd(order[kk + 7])
    Q = TMP + 16
    quarter = [f'v_cvt_pk_bf16_f32 v{Q}, v{D1}, v{D1+1}\nv_cvt_pk_bf16_f32 v{Q+1}, v{D1+2}, v{D1+3}\nv_xor_b32 v{Q+2}, s10, v{Q}\nv_xor_b32 v{Q+3}, s10, v{Q+1}',
               f'v_permlane32_swap_b32 v{Q}, v{Q+2}\nv_permlane32_swap_b32 v{Q+1}, v{Q+3}', f'buffer_store_dwordx4 v[{Q}:{Q+3}], v11, {SWS}, s44 offen sc1']
    for kk in range(10):
        e(f'v_mfma_f32_32x32x16_bf16 v[{D0}:{D0+15}], v[{AB+4*kk}:{AB+4*kk+3}], v[{F0+4*kk}:{F0+4*kk+3}], ' + ('0' if kk == 0 else f'v[{D0}:{D0+15}]'))
        if kk < 3: rd(order[kk + 12]); shadow(4)
        elif side: shadow(6)
        elif quarter: e(quarter.pop(0))
    assert not side and not quarter
    e(f's_cmp_lg_u32 s3, 0\ns_cbranch_scc1 L_xc\ns_mov_b64 exec, 1\nbuffer_store_dword v254, off, {SWS}, s4 sc1\ns_mov_b64 exec, -1')
    for h in e.hist[-3:]: h.states = 0
    e.label('L_xc', keep=True)
    t = TMP
    for h in range(2):
        for i in range(4): e(f'v_cvt_pk_bf16_f32 v{t+4*h+i}, v{D0+8*h+2*i}, v{D0+8*h+2*i+1}')
        e(f'buffer_store_dwordx4 v[{t+4*h}:{t+4*h+3}], v20, {SWS}, s{8+h} offen sc1')
    for h in range(2):
        for i in range(4): e(f'v_xor_b32 v{t+8+4*h+i}, s10, v{t+4*h+i}')
        e(f'buffer_store_dwordx4 v[{t+8+4*h}:{t+11+4*h}], v22, {SWS}, s{6+h} offen sc1')
    stamp(2)
    e('s_lshl_b32 s64, s64, 15\ns_add_u32 s64, s64, s56\ns_lshr_b32 s70, s48, 2\ns_or_b32 s70, s70, ' + ('s67' if cfg.late else '1'))
    if cfg.late:
        e('s_barrier\ns_cbranch_scc1 L_nolate'); batch(2); batch(3); e.label('L_nolate')
    for i in range(2): e(f'v_mov_b64 v[{F+2*i}:{F+2*i+1}], 0')
    Z = f'v[{F}:{F+3}]'
    zero = [f'a[{16*i}:{16*i+15}]' for i in list(range(8)) + ([] if cfg.ahead else [11])]
    def zfill(k=1):
        for _ in range(k):
            if zero: e(f'v_mfma_f32_32x32x16_bf16 {zero.pop()}, {Z}, {Z}, 0')
    e(f's_mul_i32 s{TAG}, s46, 0x9E3779B1\ns_add_u32 s{TAG}, s{TAG}, 0x7F4A7C15\ns_mul_i32 s{TAG+1}, s47, 0x85EBCA6B\ns_add_u32 s{TAG+1}, s{TAG+1}, s{TAG}'); zfill()
    for d, n in ((28, WOB), (32, OB)): e(f's_mov_b32 s{d+2}, {n}\ns_mov_b32 s{d+3}, 0x00020000')
    e(f's_mul_i32 s41, s3, 3072\nv_lshlrev_b32 v3, 4, v0\nv_add_u32 v3, s41, v3\ns_add_u32 s53, s41, {XBASE}'); zfill()
    e('s_add_u32 s42, s48, 8\ns_cmp_lt_u32 s42, s58\ns_cselect_b32 s60, 0x100001, 1\ns_mov_b32 s61, 0\ns_lshl2_add_u32 s41, s48, 8\ns_lshl_b64 s[60:61], s[60:61], s41'); zfill()
    e('s_and_b32 s41, s48, 1\ns_or_b32 s60, s60, s41\ns_lshl_b64 s[4:5], s[60:61], 4\ns_mov_b32 s41, 0x76543210\ns_cmp_eq_u32 s48, 4\ns_cselect_b32 s41, 0x76543102, s41'); zfill()
    e('s_add_u32 s60, s60, s41\ns_addc_u32 s61, s61, 0xa98\ns_sub_u32 s60, s60, s4\ns_subb_u32 s61, s61, s5\ns_lshr_b64 s[60:61], s[60:61], 4'); zfill()
    if cfg.leadpos:
        e('s_lshl3_add_u32 s41, s58, s48')
        for S in (10, 11):
            for g in range(5):
                o = [2 if g == 4 else g & 1]
                for p in range(1, S):
                    mine = [x for x, (lg, lp) in cfg.leadpos.items() if lg == g and lp <= p and x not in o and x < S]
                    o.append(mine[0] if mine else min(y for y in range(S) if y not in o))
                v = sum(x << (4 * i) for i, x in enumerate(o[1:]))
                e(f's_cmp_eq_u32 s41, {S*8+g}\ns_cselect_b32 s60, {v & 0xffffffff}, s60\ns_cselect_b32 s61, {v >> 32}, s61')
    e('s_mul_i32 s55, s43, 122880\ns_mul_i32 s41, s48, 24576\ns_add_u32 s55, s55, s41\ns_mul_i32 s45, s62, 122880\ns_add_u32 s45, s45, s55'); zfill()
    e(f's_lshr_b32 s63, s43, 1\ns_min_u32 s63, s63, 8\ns_lshl4_add_u32 s63, s14, s63\ns_lshl_b32 s63, s63, 7\ns_add_u32 s63, s63, {FA_OFF}'); zfill()
    e('s_lshl_b32 s50, s50, 15\ns_add_u32 s50, s50, s56\ns_lshl_b32 s51, s51, 15\ns_add_u32 s51, s51, s56\ns_add_u32 s57, s56, 98304'); zfill(2)
    e('v_and_b32 v21, 3, v0\nv_bfe_u32 v22, v0, 3, 2\nv_lshl_add_u32 v20, v22, 2, v21\nv_lshl_add_u32 v20, s48, 4, v20')
    e(f'v_lshl_add_u32 v20, v20, 1, 1\nv_cvt_f32_u32 v20, v20\nv_mul_f32 v20, {f32(1/320)}, v20')
    e('v_bfe_u32 v22, v0, 2, 1\nv_cvt_f32_u32 v22, v22\nv_mul_f32 v22, 0x3e800000, v22\nv_lshlrev_b32 v23, 3, v4\nv_cvt_f32_u32 v1, v23\nv_fma_f32 v22, v20, v1, v22')
    for i, c in enumerate([16 * kk + j for kk in range(2) for j in range(8)]): e(f'v_fmamk_f32 v{DD+i}, v20, {f32(c)}, v22')
    for i in range(16): e(f'v_cos_f32 v{DD+i}, v{DD+i}')
    e('v_bfe_u32 v22, v0, 2, 2\nv_add_u32 v23, v23, v22\nv_lshlrev_b32 v1, 10, v23\nv_xor_b32 v22, s3, v22\nv_lshl_add_u32 v1, v22, 5, v1')
    e('v_lshl_add_u32 v1, v6, 7, v1\nv_lshl_add_u32 v1, v21, 3, v1\nv_subrev_u32 v1, s56, v1\nv_add_u32 v2, s50, v1')
    for i in range(8): e(f'v_cvt_pk_bf16_f32 v{F+i}, v{DD+2*i}, v{DD+2*i+1}')
    e(f'v_sub_u32 v22, 1, v4\nv_lshlrev_b32 v22, 12, v22\nv_lshl_add_u32 v22, v6, 11, v22\nv_and_b32 v21, 15, v0\nv_lshl_add_u32 v22, v21, 7, v22')
    e(f'v_lshrrev_b32 v21, 1, v21\nv_lshl_add_u32 v22, v21, 4, v22\nv_add_u32 v{VX}, {XBASE}, v22')
    for i in range(1, 8): e(f'v_xor_b32 v{VX+i}, {16*i}, v{VX}')
    for i in range(0 if cfg.ahead else 4): e(f'v_mov_b64 v[{B+56+2*i}:{B+57+2*i}], 0\nv_mov_b64 v[{B+120+2*i}:{B+121+2*i}], 0')
    OV = TMP + 20
    e('v_lshrrev_b32 v21, 3, v0\nv_bfe_u32 v22, v21, 1, 1\nv_lshlrev_b32 v22, 2, v22\nv_and_b32 v23, 7, v0\nv_xor_b32 v22, v22, v23')
    e(f'v_lshlrev_b32 v21, 10, v21\nv_lshl_add_u32 v{OV}, v22, 4, v21')
    for t in range(1, 4): e(f'v_add_u32 v{OV+t}, {t*7168}, v{OV}')
    e('s_and_b32 s66, s15, 7\ns_lshl_b32 s66, s66, 7\ns_lshl_b32 s41, s3, 16\ns_add_u32 s66, s66, s41')
    oload = lambda t: f'buffer_load_dwordx4 v{OV+(t&3)}, {SWO}, s66 offen offset:{(t&3)*1024} lds'
    e(f'v_lshrrev_b32 v21, 4, v0\nv_mul_u32_u24 v248, {4*983040}, v21\nv_and_b32 v21, 15, v0\nv_lshl_add_u32 v248, v21, 4, v248')
    e('s_lshr_b32 s41, s3, 1\ns_lshl1_add_u32 s11, s52, s41\ns_mul_i32 s11, s11, 3\ns_add_u32 s11, s11, s49\ns_mul_i32 s11, s11, 5\ns_add_u32 s11, s11, s48')
    e(f's_and_b32 s41, s3, 1\ns_lshl3_add_u32 s11, s11, s41\ns_lshl_b32 s11, s11, 8\ns_add_u32 s11, s11, {Y_OFF}')
    e(f's_lshl4_add_u32 s41, s40, s39\ns_lshl_b32 s41, s41, 3\ns_add_u32 s41, s41, {FA_OFF}\nv_lshlrev_b32 v21, 11, v0\nv_mov_b32 v22, s{TAG}\nv_mov_b32 v23, s{TAG+1}')
    if cfg.probe == 'setup': stamp(1)
    defer = cfg.late and cfg.pubpos
    flag_a = f's_mov_b64 exec, 0xff\nbuffer_store_dwordx2 v[22:23], v21, {SWS}, s12 offen sc1\ns_mov_b64 exec, -1'
    e('s_mov_b32 s12, s41\ns_xor_b32 s13, s3, 1\ns_or_b32 s13, s13, s70')
    if defer:
        e('s_cmp_lg_u32 s70, 0\ns_cbranch_scc1 L_now\ns_cmp_eq_u32 s68, 0\ns_waitcnt vmcnt(13)\ns_cbranch_scc1 L_b0\ns_waitcnt vmcnt(0)\ns_branch L_b0')
        e.label('L_now')
    e('s_cmp_lg_u32 s3, 1\ns_waitcnt vmcnt(0)\ns_barrier\ns_cbranch_scc1 L_a4\n' + flag_a)
    e.label('L_a4')
    stamp(3)
    e('s_cmp_eq_u32 s70, 0\ns_cbranch_scc1 L_b0\ns_cmp_eq_u32 s67, 0\ns_cbranch_scc1 L_hadpre')
    if not cfg.early: batch(0)
    batch(1)
    e('s_cmp_eq_u32 s59, 1\ns_cbranch_scc1 L_helper')
    e.label('L_hadpre')
    batch(2); batch(3)
    e('s_cmp_eq_u32 s68, 0\ns_waitcnt vmcnt(8)\ns_cbranch_scc1 L_b0\ns_waitcnt vmcnt(0)')
    e.label('L_b0')
    if cfg.trace: e('s_mov_b32 s96, 0\nv_mov_b32 v249, 0')
    if cfg.ahead: e('s_mov_b32 s42, 4\ns_bitcmp0_b32 s58, 0\ns_cbranch_scc1 L_other')
    else: e('s_sub_u32 s42, s58, 1\ns_lshr_b32 s42, s42, 1\ns_bitcmp1_b32 s58, 0\ns_cbranch_scc1 L_other')

    e0 = e
    class Filt:
        hist = property(lambda self: e0.hist)
        def label(self, *a, **k): e0.label(*a, **k)
        def __call__(self, t):
            for x in t.split('\n'):
                if not x.startswith(cfg.drop): e0(x)
    skips = [0]; NV = 10 if cfg.skip31 else 11
    def interval(ph, rdw=True, ldw='w', ldx=True, maxT=8, maxC=8, rda=True, units=range(8), lead_in=False, minT=0, minC=0, minG=0, traced=True):
        e = Filt() if cfg.drop else e0
        if cfg.trace and traced: e('s_memrealtime s[98:99]')
        loads, misc = [], []
        if ldx:
            loads = [xload(t) for t in range(3)] + [(wload if ldw == 'w' else oload if ldw == 'o' else lambda t: '')(t) for t in range(8)]
            if ldw == 'w':
                if cfg.skip31:
                    skips[0] += 1
                    loads[10] = f's_cbranch_vccnz L_s{skips[0]}\n{loads[10]}\nL_s{skips[0]}:'
                if ph % 2 == 0: misc += [(0, 3, 's_and_b32 s62, s60, 15'), (0, 3, 's_mov_b32 s65, 0' if cfg.fakew else 's_lshl_b32 s65, s62, 15'), (0, 3, 's_add_u32 s65, s65, s54')]
                else: misc += [(0, 3, 's_add_u32 s65, s65, 16384'), (0, 11, 's_lshr_b64 s[60:61], s[60:61], 4')]
            if ldw != 'n': misc += [(3, 3, 's_mov_b32 m0, s51')]
            if ph % 2 == 0: misc += [(3, 11, 's_add_u32 s45, s45, 12288')]
            elif ldw == 'w': misc += [(3, 11, 's_mov_b32 s45, 0' if cfg.fakex else 's_mul_i32 s45, s62, 122880'), (3, 11, 's_add_u32 s45, s45, s55')]
            if ldw != 'n': misc += [(7, 7, 's_add_u32 m0, s51, 4096')]
            if ldw == 'o': misc += [(7, 7, 's_add_u32 s66, s66, 32768')]
        if rdw: misc += [(7, 11, 's_mov_b32 s51, s50'), (7, 11, 's_add_u32 s50, s50, 32768'), (7, 11, 's_cmp_eq_u32 s50, s57\ns_cselect_b32 s50, s56, s50')]
        if ldx and ldw == 'o': misc += [(11, 11, f's_add_u32 s66, s66, {262144 - 32768}')]
        done = [0]; pat = cfg.vmpat
        if lead_in:
            loads = [wload(t) for t in range(8)]; pat = ['T'] * 8; done = [3]
            misc = [m for m in misc if 's45' not in m[2]]
            while misc[0][1] <= 3 or any(m[1] <= 3 for m in misc): e(misc.pop(0)[2])
        def slot(i, c):
            if ldx and c in pat[i]:
                for t in loads.pop(0).split('\n'):
                    if t.endswith(':'): e.hist[-1].states = 0; e.label(t[:-1], keep=True)
                    else: e(t)
                done[0] += 1
                while misc and misc[0][0] <= done[0] and any(m[1] <= done[0] for m in misc): e(misc.pop(0)[2])
            elif c != 'T':
                for _ in range(2):
                    if misc and misc[0][0] <= done[0]: e(misc.pop(0)[2])
        ntr = [3, 3, 2, 2, 2, 2, 2, 0]; k = 0
        for i in units:
            U = (8 * ph + i - 2) % 32; s, u = U >> 4, U & 15; j, kk = u >> 1, u & 1
            if minT <= i < maxT:
                d = DD + 16 * (j & 3); w = W + 4 * (U % 8)
                e(f'v_mfma_f32_32x32x16_bf16 v[{d}:{d+15}], v[{F+4*kk}:{F+4*kk+3}], a[{w}:{w+3}], ' + ('0' if kk == 0 else f'v[{d}:{d+15}]'))
            if i == 0 and ldx and not lead_in: e(f's_add_u32 m0, s53, {ph*12288}')
            slot(i, 'T')
            if rdw:
                for _ in range(ntr[i]):
                    f, h = k >> 1, k & 1; r = W + 4 * f + 2 * h; k += 1
                    e(f'ds_read_b64_tr_b16 a[{r}:{r+1}], v2 offset:{(f & 1)*16384 + h*4096 + (f >> 1)*256}')
            if minC <= i < maxC:
                P = ((U >> 2) - 1) % 8; sp, p = P >> 2, P & 3; d0 = DD + 16 * ((2 * p) & 3)
                for x in range(4):
                    bn = 4 * (U & 3) + x
                    e(f'v_cvt_pk_bf16_f32 v{B+64*sp+4*bn+p}, v{d0+bn}, v{d0+16+bn}')
            for v in range(2):
                a = A + 4 * ((2 * U + v) % 8); c = ACC + 8 * u + 4 * v; b_ = B + 64 * (1 - s) + 4 * u
                if not lead_in and i >= minG: e(f'v_mfma_f32_16x16x32_bf16 a[{c}:{c+3}], a[{a}:{a+3}], v[{b_}:{b_+3}], a[{c}:{c+3}]')
                if rda and not lead_in:
                    a2 = A + 4 * ((2 * (U + 2) + v) % 8)
                    e(f'ds_read_b128 a[{a2}:{a2+3}], v{VX+i} offset:{((ph + 2) % 4)*12288 + v*4096}')
                slot(i, 'ab'[v])
                if cfg.fakexor and not lead_in:
                    for x in range(2): e(f'v_xor_b32 v{232+2*v+x}, v20, v{b_+2*v+x}')
        assert not loads and not misc
        if rdw: e('v_add_u32 v2, s50, v1')
        if cfg.trace and traced: e('s_mov_b32 m0, s96\ns_add_u32 s96, s96, 1\nv_writelane_b32 v249, s98, m0')
    def await_xf(ph):
        e(f's_cmp_lg_u32 s3, 0\ns_cbranch_scc1 L_go{ph}')
        poll(f'L_polla{ph}', 64, True, TMP, 63)
        e.label(f'L_go{ph}')
        e(f's_add_u32 m0, s53, {ph*12288}\ns_barrier')
        stamp(4)
        for h in range(2):
            if h: e(f's_add_u32 m0, s53, {(ph+h)*12288}\ns_add_u32 s45, s45, 12288')
            for t in range(3): e(xload(t))
        e('s_mov_b32 s45, s10' if cfg.ahead else 's_mul_i32 s45, s62, 122880\ns_add_u32 s45, s45, s55')
    def start(ph):
        e('s_barrier'); interval(ph, lead_in=True, minT=2, minC=6)
        e('s_waitcnt vmcnt(8) lgkmcnt(0)')
        if cfg.hookpos == 1 and not cfg.ahead: await_xf(ph)
        else: e('s_barrier')
        if defer:
            e(f's_cmp_lg_u32 s13, 0\ns_cbranch_scc1 L_pub{ph}\n' + flag_a)
            for h in e.hist[-3:]: h.states = 0
            e.label(f'L_pub{ph}', keep=True)
            if cfg.stamps:
                e(f's_cmp_lg_u32 s70, 0\ns_cbranch_scc1 L_st{ph}'); stamp(3); e.label(f'L_st{ph}')
        interval(ph + 1, lead_in=True)
        if cfg.ahead:
            e('s_mul_i32 s10, s62, 122880\ns_add_u32 s10, s10, s55')
            for n in (2, 3):
                e('s_waitcnt vmcnt(8) lgkmcnt(0)\ns_barrier'); interval((ph + n) % 4, lead_in=True)
        e('s_waitcnt lgkmcnt(0)')
        if cfg.hookpos == 2 or cfg.ahead: await_xf(ph)
        if cfg.ahead:
            for n in (2, 3):
                e('s_waitcnt vmcnt(3)\ns_barrier')
                interval((ph + n) % 4, rdw=False, ldw='n', maxT=0, maxC=0, minG=2 if n == 2 else 0)
            e('s_mul_i32 s45, s62, 122880\ns_add_u32 s45, s45, s55')
        e(f's_cmp_eq_u32 s3, 3\ns_cselect_b64 vcc, -1, 0\ns_waitcnt vmcnt({11 if cfg.hookpos == 1 and not cfg.ahead else 3}) lgkmcnt(0)')
    def loop():
        for ph in range(4):
            if ph == 2: e.label('L_phase2', keep=True)
            if not cfg.nobar: e('s_barrier')
            interval(ph)
            if ph == 3: e('s_sub_u32 s42, s42, 1\ns_cmp_lg_u32 s42, 0')
            e(f's_waitcnt vmcnt({NV}) lgkmcnt(4)')
        e('s_cbranch_scc1 L_phase0')
    start(0 if cfg.ahead else 2)
    n = len(e.lines); loop(); del e.lines[n:]
    e.raw('.p2align 3'); e.label('L_phase0', keep=True)
    loop()
    TW = 'n' if cfg.wopos else 'o'
    e('s_barrier'); interval(0, ldw=TW)
    if cfg.tlb:
        e(f'v_min_u32 v21, 14, v0\nv_lshlrev_b32 v21, 21, v21\nv_add_u32 v21, {(2 << 20) - 128}, v21\nbuffer_load_dword v253, v21, {SWS}, 0 offen')
        e(touch + '\ns_waitcnt vmcnt(13) lgkmcnt(4)')
    elif cfg.codepf > 2: e(touch + '\ns_waitcnt vmcnt(12) lgkmcnt(4)')
    else: e(f's_waitcnt vmcnt({3 if cfg.wopos else 11}) lgkmcnt(4)')
    e('s_barrier'); interval(1, ldw=TW); e(f's_waitcnt vmcnt({0 if cfg.wopos else 8})')
    e('s_barrier'); interval(2, rdw=False, ldx=False, maxT=2, maxC=6)
    gonly = lambda i: interval(3 if i < 8 else 0, rdw=False, ldx=False, maxT=0, maxC=0, rda=i < 8, units=[i % 8], traced=False)
    for i in range(2 if cfg.ystag else 10): gonly(i)
    stamp(5)
    if cfg.trace:
        e(f's_lshl_b32 s41, s2, 2\ns_add_u32 s41, s41, s3\ns_lshl_b32 s41, s41, 8\ns_add_u32 s41, s41, {STAMP_OFF + (1 << 20)}\nv_lshlrev_b32 v21, 2, v0')
        e(f'buffer_store_dword v249, v21, {SWS}, s41 offen')
    k = 0
    for hb in range(2):
        for r in range(4):
            e(f's_add_u32 s41, s11, {r*983040}')
            for pl in range(2):
                t = DD + 8 * (k % 2); o = B + 4 * k
                for x in range(8): e(f'v_accvgpr_read_b32 v{t+x}, a{ACC+8*(8*hb+x)+4*pl+r}')
                for x in range(4): e(f'v_cvt_pk_bf16_f32 v{o+x}, v{t+2*x}, v{t+2*x+1}')
                if cfg.ystag and hb == 0: gonly(k + 2)
                e(f'buffer_store_dwordx4 v[{o}:{o+3}], v248, {SWS}, s41 offen offset:{hb*1024+pl*512} {cfg.y_aux}')
                k += 1
    e('s_branch L_phasec')
    e.label('L_other')
    start(2 if cfg.ahead else 0)
    e('s_branch L_phase2')
    e.label('L_helper')
    if cfg.stamps: e('s_memrealtime s[80:81]\ns_memrealtime s[82:83]\ns_waitcnt lgkmcnt(0)')
    assert n0 == n1
    e('s_and_b32 s41, s15, 1\ns_lshl_b32 s41, s41, 3\ns_add_u32 s41, s41, s14\ns_lshl_b32 s41, s41, 2\ns_add_u32 s41, s41, s3')
    e('s_and_b32 s42, s41, 7\ns_lshl_b32 s42, s42, 2\ns_lshr_b32 s43, s41, 3')
    e('v_lshrrev_b32 v21, 4, v0\nv_add_u32 v21, s42, v21\nv_lshlrev_b32 v21, 20, v21\nv_and_b32 v22, 15, v0\nv_lshl_add_u32 v21, v22, 11, v21')
    nitem = (max(cfg.splits) - cfg.hstart) * 6
    for it in range(-(-nitem // 8)):
        e(f's_add_u32 s44, s43, {8*it}')
        e('s_mul_i32 s45, s44, 43\ns_lshr_b32 s45, s45, 8\ns_mul_i32 s46, s45, 6\ns_sub_u32 s46, s44, s46\ns_lshr_b32 s47, s46, 1')
        guard = 8 * it + 8 > (min(cfg.splits) - cfg.hstart) * 6
        if guard: e(f's_cmp_eq_u32 s47, 2\ns_cselect_b32 s44, {n2 - cfg.hstart}, {n0 - cfg.hstart}\ns_cmp_ge_u32 s45, s44\ns_cbranch_scc1 L_hs{it}')
        e(f's_mul_i32 s47, s47, {n0}\ns_add_u32 s45, s45, s47\ns_lshl_b32 s45, s45, 15')
        e(f's_and_b32 s46, s46, 1\ns_lshl_b32 s46, s46, 10\ns_add_u32 s45, s45, s46\ns_add_u32 s45, s45, {cfg.hstart*32768 + 384}')
        e(f'buffer_load_dword v{32+it}, v21, {SW}, s45 offen')
        if guard: e.label(f'L_hs{it}')
    e.label('L_h1')
    if cfg.fwarm: e(f's_lshl_b32 s45, s41, 13\ns_add_u32 s45, s45, {FA_OFF}\nv_lshlrev_b32 v21, 7, v0\nbuffer_load_dword v30, v21, {SWS}, s45 offen')
    if cfg.wo_pf: e(f's_lshl_b32 s45, s41, 13\nv_lshlrev_b32 v21, 7, v0\nbuffer_load_dword v31, v21, {SWO}, s45 offen')
    e.label('L_h2')
    e('s_waitcnt vmcnt(0)\ns_barrier')
    stamp(5)
    def fetch_wo():
        for h in range(2):
            for t in range(8):
                if t % 4 == 0: e(f's_add_u32 m0, s56, {h*32768 + t*1024}')
                e(oload(t))
                if t % 4 == 3: e(f's_add_u32 s66, s66, {32768 if t == 3 else 262144 - 32768}')
    fetch_wo()
    e('s_waitcnt vmcnt(0)')
    e.label('L_phasec')
    G, YA, CA, WO = 32, 72, 120, 0
    e('s_lshl_b32 s39, s14, 1\ns_lshr_b32 s40, s15, 4\ns_add_u32 s39, s39, s40\ns_and_b32 s40, s15, 15')
    e(f'v_and_b32 v8, 31, v0\ns_lshl_b32 s41, s3, 5\ns_add_u32 s41, s41, 32\nv_add_u32 v8, s41, v8\nv_cvt_f32_u32 v8, v8\nv_mul_f32 v8, {f32(1/320)}, v8')
    e('v_lshrrev_b32 v9, 5, v0\nv_cvt_f32_u32 v9, v9\nv_mul_f32 v9, 0x3e800000, v9')
    twiddles(e, G, 8, 9, [2 * j + 1 for j in range(8)], 184)
    if cfg.fbmode == 'push':
        e('v_lshrrev_b32 v21, 1, v0\nv_lshlrev_b32 v21, 12, v21\nv_and_b32 v22, 1, v0\nv_lshl_add_u32 v21, v22, 8, v21')
        e('s_lshr_b32 s41, s52, 3\ns_mul_i32 s41, s41, 5\ns_mul_i32 s42, s49, 10\ns_add_u32 s41, s41, s42\ns_add_u32 s41, s41, s48\ns_lshl_b32 s41, s41, 3')
        e(f's_and_b32 s42, s52, 7\ns_lshl_b32 s42, s42, 9\ns_add_u32 s41, s41, s42\ns_add_u32 s41, s41, {FB_OFF}')
        e(f's_lshl_b32 s43, s39, 4\ns_add_u32 s43, s43, s40\ns_lshl_b32 s42, s43, 8\ns_add_u32 s42, s42, {FB_OFF}')
    else:
        e('v_lshrrev_b32 v21, 3, v0\nv_lshlrev_b32 v21, 15, v21\nv_and_b32 v22, 7, v0\nv_lshl_add_u32 v21, v22, 4, v21')
        e('s_lshr_b32 s41, s52, 3\ns_mul_i32 s41, s41, 5\ns_mul_i32 s42, s49, 10\ns_add_u32 s41, s41, s42\ns_add_u32 s41, s41, s48\ns_lshl_b32 s41, s41, 7')
        e(f's_and_b32 s42, s52, 7\ns_lshl_b32 s42, s42, 12\ns_add_u32 s41, s41, s42\ns_add_u32 s41, s41, {FB_OFF}')
        e(f's_lshl_b32 s43, s39, 4\ns_add_u32 s43, s43, s40\ns_lshr_b32 s42, s40, 1\ns_lshl_b32 s42, s42, 12\ns_add_u32 s42, s42, {FB_OFF}')
        if cfg.fbmode == 'pull8': e('s_lshl_b32 s44, s14, 15\ns_add_u32 s42, s42, s44')
    e('s_and_b32 s44, s3, 1\ns_lshr_b32 s45, s3, 1')
    GS = 16 * 30720 - 10240
    if cfg.ffirst:
        e(f's_lshl_b32 s46, s39, 5\ns_add_u32 s46, s46, s40\ns_mul_i32 s46, s46, 30\ns_add_u32 s46, s46, s3\ns_lshl_b32 s46, s46, 10\ns_add_u32 s46, s46, {Y_OFF}')
        e(f's_mul_i32 s4, s45, {GS}\ns_add_u32 s4, s4, s46')
    else:
        e('s_lshl_b32 s46, s39, 5\ns_add_u32 s46, s46, s40\ns_lshl_b32 s47, s44, 4\ns_add_u32 s46, s46, s47')
        e(f's_mul_i32 s46, s46, 30\ns_add_u32 s46, s46, s45\ns_lshl_b32 s46, s46, 10\ns_add_u32 s46, s46, {Y_OFF}')
    e('v_lshlrev_b32 v2, 4, v0\nv_add_u32 v3, 0x10000, v2\ns_lshl_b32 s47, s3, 10\ns_add_u32 s47, s47, 0x10000')
    e('v_lshrrev_b32 v7, 5, v0\nv_bfe_u32 v8, v0, 2, 2\nv_lshl_add_u32 v7, v7, 2, v8\nv_lshlrev_b32 v4, 7, v7')
    e('v_bfe_u32 v7, v0, 4, 1\nv_and_b32 v8, 1, v0\nv_lshl_add_u32 v7, v7, 1, v8\nv_bfe_u32 v8, v0, 3, 1\nv_xor_b32 v8, s44, v8\nv_lshl_add_u32 v7, v8, 2, v7')
    e('v_lshl_add_u32 v4, v7, 4, v4\nv_bfe_u32 v7, v0, 1, 1\nv_lshl_add_u32 v4, v7, 3, v4')
    wor = [f'ds_read_b64_tr_b16 a[{WO+4*ks+2*h}:{WO+4*ks+2*h+1}], v4 offset:{ks*2048+h*1024}' for ks in range(32) for h in range(2)]
    e('s_waitcnt vmcnt(16)\ns_barrier')
    look = f'buffer_load_dwordx2 v[{TMP+4}:{TMP+5}], v23, {SWS}, s42 offen sc1'
    judge = lambda n: f's_add_u32 s38, s38, 1\ns_waitcnt vmcnt({n})\nv_cmp_ne_u64 vcc, s[{TAG}:{TAG+1}], v[{TMP+4}:{TMP+5}]\ns_cmp_lt_u32 s38, {SPIN}\ns_nop 0\ns_cselect_b32 s51, vcc_lo, 0'
    def wave0(L, text):
        e(f's_cmp_lg_u32 s3, 0\ns_cbranch_scc1 {L}\n{text}'); e.label(L)
    e(f's_mov_b32 s51, 0\ns_mov_b32 s38, 0\nv_min_u32 v23, 29, v0\nv_lshlrev_b32 v23, 3, v23\nv_mov_b32 v20, {XLDS}')
    if cfg.stale: wave0('L_l0', look)
    for t in wor: e(t)
    e('s_waitcnt lgkmcnt(0)')
    wave0('L_l1', judge(0) if cfg.stale else 's_mov_b32 s51, -1')
    e('s_xor_b32 s50, s3, 1\ns_or_b32 s50, s50, s59\ns_waitcnt vmcnt(0)\ns_barrier')
    stamp(6)
    e('s_cbranch_scc1 L_c0')
    publish(32, 21, 41)
    e.label('L_c0')
    def fetch(cs):
        for i in range(5 * cs, 5 * cs + 5):
            src = f's{4 if i % 5 == 2 else 46}, {(i // 5) * 10240 + (i % 5) * 4096 + (GS if i % 5 > 2 else 0)}'
            e(f's_add_u32 m0, s47, {i*4096}\ns_add_u32 s41, {src}\nbuffer_load_dwordx4 v2, {SWS}, s41 offen {cfg.yld_aux} lds')
        if cs == cfg.yorder[2] and cfg.zlocal: e(f'buffer_load_dword v255, v22, {SWS}, s100 offen sc1')
    def await_split(cs, more=0):
        L = f'L_pollb{cs}'
        e.label(L, keep=True)
        e(f's_and_b32 s50, s51, {0x3ff << (10 * cs) | more}\ns_cbranch_scc0 {L}_out\n{look}\n{judge(0)}\ns_branch {L}')
        e.label(L + '_out', keep=True)
        e('s_barrier')
    started = set()
    def idft(i0, i1, left, fill=None):
        if fill:
            for _ in range(cfg.tpre): e(fill.pop(0))
        if left is not None: e(f's_waitcnt vmcnt({left})')
        e('s_barrier')
        fr = list(range(4 * i0, 4 * i1))
        rdy = lambda x: e(f'ds_read_b128 v[{YA+4*(x%12)}:{YA+4*(x%12)+3}], v3 offset:{fr[x]*1024}')
        for x in range(min(8, len(fr))): rdy(x)
        for x, ph in enumerate(fr):
            m, side = ph >> 1, ph & 1; kb = m % 10
            if cfg.ffirst: side, kb = (ph % 20) // 10, ph % 10
            c = CA + 16 * side
            e(f'v_mfma_f32_32x32x16_bf16 v[{c}:{c+15}], v[{YA+4*(x%12)}:{YA+4*(x%12)+3}], v[{G+4*kb}:{G+4*kb+3}], ' + (f'v[{c}:{c+15}]' if side in started else '0'))
            started.add(side)
            if x + 8 < len(fr): rdy(x + 8)
            budget = 24
            while fill and budget > 0:
                budget -= 8 if fill[0].startswith(('v_exp', 'v_rcp')) else 4; e(fill.pop(0))
    L2E = 1.4426950408889634
    f_, g_ = CA, CA + 16
    pr = lambda r, i: f'v[{r+i}:{r+i+1}]'
    def half_gate(r, sc):
        L = [f'v_pk_mul_f32 {pr(r, i)}, {pr(r, i)}, s[{sc}:{sc+1}] op_sel_hi:[1,0]' for i in range(0, 16, 2)]
        L += [f'v_exp_f32 v{r+i}, v{r+i}' for i in range(16)]
        L += [f'v_pk_add_f32 {pr(r, i)}, {pr(r, i)}, 1.0 op_sel_hi:[1,0]' for i in range(0, 16, 2)]
        return L + [f'v_rcp_f32 v{r+i}, v{r+i}' for i in range(16)]
    tanh = half_gate(f_, 68) + [f'v_pk_fma_f32 {pr(f_, i)}, {pr(f_, i)}, -2.0, 1.0 op_sel_hi:[1,0,0]' for i in range(0, 16, 2)]
    e(f's_mov_b32 s68, {f32(2*L2E/80)}\ns_mov_b32 s70, {f32(-L2E/80)}')
    c0, c1, c2 = cfg.yorder
    m1, m2, zl = 0x3ff << (10 * c1), 0x3ff << (10 * c2), cfg.zlocal
    e('v_and_b32 v22, 15, v0\nv_lshlrev_b32 v22, 2, v22')
    await_split(c0)
    if cfg.adapt:
        wave0('L_l2', look)
        fetch(c0)
        if cfg.probe == 'a0': stamp(1)
        wave0('L_l3', judge(5) + '\nv_mov_b32 v24, s51\nds_write_b32 v20, v24\ns_waitcnt lgkmcnt(0)')
        e('s_barrier\nds_read_b32 v24, v20\nv_readfirstlane_b32 s5, v24')
        e(f's_and_b32 s6, s5, {m1}\ns_cbranch_scc1 L_n1')
        fetch(c1)
        e(f's_and_b32 s50, s5, {m2}\ns_cbranch_scc1 L_n2')
        fetch(c2)
        e(f's_waitcnt vmcnt({10 + zl})\ns_branch L_i0')
        e.label('L_n1'); e('s_waitcnt vmcnt(0)')
        e.label('L_n2'); e('s_waitcnt vmcnt(5)')
        e.label('L_i0')
        if cfg.probe == 'a1': stamp(1)
        idft(5 * c0, 5 * c0 + 5, None)
        if cfg.probe == 'i0': stamp(1)
        e(f's_and_b32 s50, s5, {m1 | m2}\ns_cbranch_scc0 L_all\ns_cmp_eq_u32 s6, 0\ns_cbranch_scc1 L_pollb{c2}')
        await_split(c1); fetch(c1)
        await_split(c2); fetch(c2)
        e.label('L_all')
    elif cfg.merge:
        if cfg.merge == 3: wave0('L_l2', look)
        fetch(c0)
        if cfg.merge == 3: wave0('L_l3', judge(5))
        if cfg.merge == 2:
            await_split(c1); fetch(c1); await_split(c2)
        else:
            await_split(c1, m2); fetch(c1)
        fetch(c2)
        idft(5 * c0, 5 * c0 + 5, 10 + zl)
    else:
        fetch(c0)
        if cfg.probe == 'a0': stamp(1)
        await_split(c1); fetch(c1)
        if cfg.probe == 'a1': stamp(1)
        idft(5 * c0, 5 * c0 + 5, 5)
        if cfg.probe == 'i0': stamp(1)
        await_split(c2); fetch(c2)
    stamp(7)
    idft(5 * c1, 5 * c1 + 5, 5 + zl)
    if cfg.probe == 'i1': stamp(1)
    idft(5 * c2, 5 * c2 + 3, 2 + zl)
    idft(5 * c2 + 3, 5 * c2 + 5, 0, tanh)
    ZO = Y_OFF + c2 * 10240
    if cfg.zovery: e(f's_lshl_b32 s50, s39, 5\ns_add_u32 s50, s50, s40\ns_mul_i32 s50, s50, 30720\ns_lshl_b32 s41, s3, 11\ns_add_u32 s50, s50, s41\ns_add_u32 s50, s50, {ZO}')
    else: e(f's_lshl_b32 s50, s39, 2\ns_add_u32 s50, s50, s3\ns_lshl_b32 s50, s50, 5\ns_lshl_b32 s41, s40, 1\ns_add_u32 s50, s50, s41\ns_lshl_b32 s50, s50, 10\ns_add_u32 s50, s50, {Z_OFF}')
    stamp(8)
    for t in tanh + half_gate(g_, 70): e(t)
    for i in range(0, 16, 2): e(f'v_pk_mul_f32 {pr(f_, i)}, {pr(f_, i)}, {pr(g_, i)}')
    if cfg.zlocal: e('v_cmp_ne_u32 vcc, v254, v255')
    for i in range(8): e(f'v_cvt_pk_bf16_f32 v{12+i}, v{f_+2*i}, v{f_+2*i+1}')
    zst = lambda aux: f'buffer_store_dwordx4 v[12:15], v2, {SWS}, s50 offen {aux}\nbuffer_store_dwordx4 v[16:19], v2, {SWS}, s50 offen offset:1024 {aux}'
    if cfg.zlocal:
        e('s_cbranch_vccnz L_zfar\n' + zst(cfg.zl_aux) + '\ns_branch L_zdone'); e.label('L_zfar')
        e(zst('sc1')); e.label('L_zdone')
        e('s_mov_b32 s101, vcc_lo')
    else: e(zst('sc1'))
    e(f'v_lshlrev_b32 v21, 7, v0\ns_lshl_b32 s41, s39, 11\ns_lshl_b32 s42, s40, 3\ns_add_u32 s41, s41, s42\ns_add_u32 s41, s41, {FC_OFF}')
    e(f's_lshl_b32 s42, s43, 7\ns_add_u32 s42, s42, {FC_OFF}')
    e('s_lshl_b32 s46, s39, 1\ns_lshr_b32 s47, s40, 3\ns_add_u32 s46, s46, s47\ns_and_b32 s47, s40, 7')
    e('s_mov_b32 s60, s50\ns_lshl_b32 s50, s39, 5\ns_add_u32 s50, s50, s44\ns_mul_i32 s50, s50, 30720\ns_and_b32 s53, s46, 1\ns_lshl_b32 s53, s53, 1\ns_add_u32 s53, s53, s45')
    e(f's_lshl_b32 s53, s53, 11\ns_add_u32 s50, s50, s53\ns_add_u32 s50, s50, {ZO}')
    e('s_lshl_b32 s53, s45, 15\nv_add_u32 v5, s53, v3\ns_lshl_b32 s51, s44, 11\ns_add_u32 s51, s51, s53\ns_add_u32 s51, s51, 0x10000')
    if cfg.ofull:
        e('s_lshr_b32 s54, s46, 4\ns_bfe_u32 s55, s46, 0x10003\ns_and_b32 s56, s46, 7\ns_lshl2_add_u32 s56, s56, s3\ns_lshl_b32 s56, s56, 4')
        e('s_mul_i32 s54, s54, 1000\ns_add_u32 s54, s54, s55\ns_lshl3_add_u32 s54, s54, s47\ns_lshl_b32 s54, s54, 7')
        e('v_lshrrev_b32 v8, 3, v0\nv_add_u32 v7, s56, v8\nv_and_b32 v10, 7, v0\nv_lshl_add_u32 v9, v10, 4, s54\nv_lshl_add_u32 v6, v7, 11, v9\nv_add_u32 v11, 0x4000, v6')
        e(f'v_mov_b32 v9, {BIG}\ns_movk_i32 s55, 500\nv_cmp_gt_u32 vcc, s55, v7\ns_movk_i32 s55, 492\nv_cndmask_b32 v6, v9, v6, vcc\nv_cmp_gt_u32 vcc, s55, v7\nv_cndmask_b32 v11, v9, v11, vcc')
        e('v_xor_b32 v9, v8, v10\nv_lshlrev_b32 v9, 4, v9\nv_lshl_add_u32 v9, v8, 7, v9\nv_lshl_add_u32 v24, s3, 11, v9')
        e('v_and_b32 v7, 31, v0\nv_lshl_add_u32 v7, s45, 5, v7\nv_lshrrev_b32 v8, 5, v0\nv_lshl_add_u32 v8, s44, 2, v8\nv_xor_b32 v8, v8, v10\nv_lshlrev_b32 v8, 4, v8')
        e('v_lshl_add_u32 v25, v7, 7, v8\nv_xor_b32 v26, 32, v25')
    else:
        e('s_lshr_b32 s54, s46, 4\ns_bfe_u32 s55, s46, 0x10003\ns_and_b32 s56, s46, 7\ns_lshl_b32 s56, s56, 6\ns_lshl_b32 s57, s45, 5\ns_add_u32 s56, s56, s57')
        e('s_mul_i32 s54, s54, 1000\ns_add_u32 s54, s54, s55\ns_lshl_b32 s54, s54, 10\ns_lshl_b32 s55, s47, 7\ns_add_u32 s54, s54, s55\ns_lshl_b32 s55, s44, 6\ns_add_u32 s54, s54, s55')
        e('v_and_b32 v7, 31, v0\nv_add_u32 v7, s56, v7\nv_lshrrev_b32 v8, 5, v0\nv_lshlrev_b32 v8, 4, v8\nv_add_u32 v8, s54, v8\nv_lshl_add_u32 v6, v7, 11, v8')
        e(f'v_mov_b32 v9, {BIG}\ns_movk_i32 s55, 500\nv_cmp_gt_u32 vcc, s55, v7\nv_cndmask_b32 v6, v9, v6, vcc')
    if cfg.wopos:
        e('s_waitcnt vmcnt(2)\ns_barrier')
        for t in wor: e(t)
        e('s_waitcnt lgkmcnt(0)')
    e('s_waitcnt vmcnt(0)\ns_barrier')
    stamp(9)
    e('s_cmp_lg_u32 s3, 0\ns_cbranch_scc1 L_d1')
    if cfg.zlocal:
        e('s_cmp_lg_u32 s101, 0\ns_cbranch_scc1 L_pfar')
        publish(16, 21, 41, cfg.zl_aux)
        e('s_branch L_pdone'); e.label('L_pfar')
        publish(16, 21, 41)
        e.label('L_pdone')
    else: publish(16, 21, 41)
    poll('L_pollc', 16, False, TMP + 4, 42)
    e.label('L_d1')
    e('s_barrier')
    stamp(10)
    ZB, OA, AH = 32, 96, cfg.zahead
    def zload(c):
        if c >= 8: return ['', '', '']
        ld = lambda x: f'buffer_load_dwordx4 v2, {SWS}, s41 offen offset:{x*1024} {cfg.zld_aux} lds'
        return [f's_add_u32 m0, s51, {c*4096}\ns_add_u32 s41, s50, {c*61440}', ld(0), ld(1)]
    for c in range(AH): e('\n'.join(zload(c)))
    for c in range(9):
        fillers = zload(c + AH)
        if c == 8 - AH and cfg.zclean == 1: fillers = [''] + zst('sc1').replace('s50', 's60').split('\n')
        if c == 8 - AH and cfg.zclean == 2: fillers = ['', 'buffer_wbl2 sc1', '']
        extra = (2 if cfg.zclean == 1 else cfg.zclean // 2) if c > 8 - AH else 0
        if c < 8:
            e(f's_waitcnt vmcnt({2 * min(AH - 1, 7 - c) + extra})\ns_barrier')
            if cfg.probe == f'z{c}': stamp(1)
        e(fillers[0])
        for x in range(4):
            if c:
                ks = 4 * (c - 1) + x; zb = ZB + 4 * (ks % 8)
                e(f'v_mfma_f32_32x32x16_bf16 v[{OA}:{OA+15}], a[{WO+4*ks}:{WO+4*ks+3}], v[{zb}:{zb+3}], ' + ('0' if ks == 0 else f'v[{OA}:{OA+15}]'))
            if c < 8 and x < 2:
                for y in range(2):
                    ks = 4 * c + 2 * x + y; zb = ZB + 4 * (ks % 8)
                    e(f'ds_read_b128 v[{zb}:{zb+3}], v5 offset:{ks*1024}')
            if x % 2 == 0: e(fillers[1 + x // 2])
    for h in range(2):
        for i in range(4): e(f'v_cvt_pk_bf16_f32 v{64+4*h+i}, v{OA+8*h+2*i}, v{OA+8*h+2*i+1}')
        if cfg.ofull: e(f'ds_write_b128 v{25+h}, v[{64+4*h}:{67+4*h}]')
        else: e(f'buffer_store_dwordx4 v[{64+4*h}:{67+4*h}], v6, {SOUT}, 0 offen offset:{32*h} {cfg.out_aux}')
    if cfg.ofull:
        e('s_waitcnt lgkmcnt(0)\ns_barrier\nds_read_b128 v[72:75], v24\nds_read_b128 v[76:79], v24 offset:1024')
        e(f'buffer_store_dwordx4 v[72:75], v6, {SOUT}, 0 offen {cfg.out_aux}\nbuffer_store_dwordx4 v[76:79], v11, {SOUT}, 0 offen {cfg.out_aux}')
    if cfg.probe == 'ost': stamp(1)
    e('s_or_b32 s41, s2, s3\ns_cmp_lg_u32 s41, 0\ns_cbranch_scc1 L_fin')
    e(f'v_mov_b32 v21, 0\ns_mov_b32 s41, {EP_OFF}')
    publish(1, 21, 41)
    e.label('L_fin')
    if cfg.stamps:
        e('s_waitcnt vmcnt(0)\ns_memrealtime s[94:95]\ns_waitcnt lgkmcnt(0)')
        for i in range(12): e(f'v_mov_b32 v{8+i}, s{72+2*i}')
        e(f's_lshl_b32 s41, s2, 2\ns_add_u32 s41, s41, s3\ns_lshl_b32 s41, s41, 6\ns_add_u32 s41, s41, {STAMP_OFF}\nv_mov_b32 v6, 0')
        for i in range(3): e(f'buffer_store_dwordx4 v[{8+4*i}:{11+4*i}], v6, {SWS}, s41 offen offset:{16*i}')
        if cfg.cyc: e(f's_sub_u32 s98, s98, s96\nv_mov_b32 v7, s98\nbuffer_store_dword v7, v6, {SWS}, s41 offen offset:48')
    e.label('L_end'); e('s_endpgm')
    if cfg.diag:
        k, mult, red = cfg.diag
        e.raw('.globl diag_kernel\n.p2align 8\n.type diag_kernel,@function'); e.label('diag_kernel')
        e('s_cmp_ge_u32 s2, 1\ns_cbranch_scc1 L_dend\ns_memrealtime s[20:21]\ns_load_dwordx2 s[12:13], s[0:1], 40\ns_waitcnt lgkmcnt(0)')
        srd(e, 24, 12, WSB)
        e(f'v_min_u32 v0, 59, v0\nv_lshlrev_b32 v1, 8, v0\nv_add_u32 v1, {STAMP_OFF}, v1')
        for i in range(4):
            e(f's_mov_b32 s30, {i*60*256}\nbuffer_load_dword v{4+i}, v1, {SWS}, s30 offen sc1\nbuffer_load_dword v{8+i}, v1, {SWS}, s30 offen offset:{4*k} sc1')
        e('s_waitcnt vmcnt(0)')
        for i in range(1, 4): e(f'v_min_u32 v4, v4, v{4+i}\nv_{red}_u32 v8, v8, v{8+i}')
        e('s_nop 1\nv_readlane_b32 s22, v4, 0\nv_readlane_b32 s23, v8, 0')
        for l in range(1, 60): e(f'v_readlane_b32 s30, v4, {l}\nv_readlane_b32 s31, v8, {l}\ns_nop 1\ns_min_u32 s22, s22, s30\ns_{red}_u32 s23, s23, s31')
        e(f's_sub_u32 s22, s23, s22\ns_min_u32 s22, s22, 20000\ns_mul_i32 s22, s22, {mult}\ns_add_u32 s22, s22, 300')
        e.label('L_diag')
        e('s_memrealtime s[28:29]\ns_waitcnt lgkmcnt(0)\ns_sub_u32 s28, s28, s20\ns_cmp_lt_u32 s28, s22\ns_cbranch_scc1 L_diag')
        e.label('L_dend'); e('s_endpgm')
        out = f'; @launch kernel={NAME} grid=(256,1,1) block=(256,1,1) lds=159744\n; @launch kernel=diag_kernel grid=(1,1,1) block=(64,1,1) lds=0\n'
        out += '.amdgcn_target "amdgcn-amd-amdhsa--gfx950"\n.text\n' + e.text()
        out += '.section .rodata,"a"\n' + kernel_desc(NAME, 448, sgpr=102, accum=256) + '\n' + kernel_desc('diag_kernel', 16) + '\n'
        open(path, 'w').write(out); return
    out = '; @launch grid=(256,1,1) block=(256,1,1) lds=159744\n.amdgcn_target "amdgcn-amd-amdhsa--gfx950"\n.text\n' + e.text()
    out += '.section .rodata,"a"\n' + kernel_desc(NAME, 448, sgpr=102, accum=256) + '\n'
    open(path, 'w').write(out)

if __name__ == '__main__':
    kw = {}
    for a in sys.argv[2:]:
        k, v = a.split('=', 1); kw[k] = eval(v)
    generate(sys.argv[1], Cfg(**kw))
```
